```python
import torch

def _softmax(x, axis=-1):
    return torch.softmax(x, dim=axis)
def _gelu(x):
    return torch.nn.functional.gelu(x, approximate="tanh")
def _silu(x):
    return torch.nn.functional.silu(x)
def _sigmoid(x):
    return torch.sigmoid(x)
def _layernorm(x, axis=-1, eps=1e-5):
    m = x.mean(dim=axis, keepdim=True)
    v = x.var(dim=axis, keepdim=True, unbiased=False)
    return (x - m) / torch.sqrt(v + eps)
def _scatter_add(tgt, idx, src, axis=0):
    return tgt.clone().index_add_(axis, idx, src)
def _segment_sum(src, seg, n):
    out = torch.zeros((n,) + src.shape[1:], dtype=src.dtype)
    return out.index_add_(0, seg, src)
def _pad(x, pw):
    flat = tuple(v for pair in reversed(pw) for v in pair)
    return torch.nn.functional.pad(x, flat)

kernel_name = 'recurrent_scan__ssm_conv_s4__mixer_token_mlp__prompt'

def setup_inputs():

    _w = (lambda a: (lambda t: t.to(torch.bfloat16) if t.is_floating_point() else t)(torch.as_tensor(a)))
    def _A_setup():
        B, L, D, N = 1, 2048, 512, 128
        A_re = -(lambda _x: torch.exp(torch.as_tensor(_x)))((lambda *s: torch.randn(*s, dtype=torch.bfloat16) * 3.2)(D, N))
        A_im = torch.pi * (lambda *s: torch.randn(*s, dtype=torch.bfloat16) * 0.2)(D, N)
        B_re = (lambda *s: torch.randn(*s, dtype=torch.bfloat16) * 0.2)(D, N)
        B_im = (lambda *s: torch.randn(*s, dtype=torch.bfloat16) * 0.2)(D, N)
        C_re = (lambda *s: torch.randn(*s, dtype=torch.bfloat16) * 0.2)(D, N)
        C_im = (lambda *s: torch.randn(*s, dtype=torch.bfloat16) * 0.2)(D, N)
        log_dt = (lambda *s: torch.randn(*s, dtype=torch.bfloat16) * 0.2)(D) * 0.5 - 4.0
        Dskip = (lambda *s: torch.randn(*s, dtype=torch.bfloat16) * 0.2)(D)
        return {
            "u": _w((lambda *s: torch.randn(*s, dtype=torch.bfloat16) * 0.05)(B, L, D)),
            "A_re": _w(A_re),
            "A_im": _w(A_im),
            "B_re": _w(B_re),
            "B_im": _w(B_im),
            "C_re": _w(C_re),
            "C_im": _w(C_im),
            "log_dt": _w(log_dt),
            "Dskip": _w(Dskip),
        }
    _A_in = _A_setup()

    def _B_setup():
        B, S, D, F = 1, 2048, 512, 1792
        return {
            "x": _w((lambda *s: torch.randn(*s, dtype=torch.bfloat16) * 0.05)(B, S, D)),
            "w1": _w((lambda *s: torch.randn(*s, dtype=torch.bfloat16) * 0.8)(S, F) * (S ** -0.5)),
            "b1": _w((lambda *s: torch.randn(*s, dtype=torch.bfloat16) * 12.8)(F) * 0.02),
            "w2": _w((lambda *s: torch.randn(*s, dtype=torch.bfloat16) * 0.2)(F, S) * (F ** -0.5)),
            "b2": _w((lambda *s: torch.randn(*s, dtype=torch.bfloat16) * 1.6)(S) * 0.02),
        }
    _B_in = _B_setup()

    return {
        "A_u": _A_in["u"],
        "A_A_re": _A_in["A_re"],
        "A_A_im": _A_in["A_im"],
        "A_B_re": _A_in["B_re"],
        "A_B_im": _A_in["B_im"],
        "A_C_re": _A_in["C_re"],
        "A_C_im": _A_in["C_im"],
        "A_log_dt": _A_in["log_dt"],
        "A_Dskip": _A_in["Dskip"],
        "B_x": _B_in["x"],
        "B_w1": _B_in["w1"],
        "B_b1": _B_in["b1"],
        "B_w2": _B_in["w2"],
        "B_b2": _B_in["b2"],
    }

def reference(A_u, A_A_re, A_A_im, A_B_re, A_B_im, A_C_re, A_C_im, A_log_dt, A_Dskip, B_x, B_w1, B_b1, B_w2, B_b2):
    def _A_ref(u, A_re, A_im, B_re, B_im, C_re, C_im, log_dt, Dskip):
        Bsz, L, D = u.shape
        dt = torch.exp(log_dt)[:, None]
        A = A_re + 1j * A_im
        Bc = B_re + 1j * B_im
        Cc = C_re + 1j * C_im
        logdA = dt * A
        dB = dt * Bc
        l = (lambda x, dt: x.to(dt))(torch.arange(L), A_re.dtype)
        P = torch.exp(logdA[:, :, None] * l[None, None, :])
        K = torch.einsum("dn,dnl,dn->dl", Cc, P, dB).real
        L2 = 2 * L
        Kp = _pad(K, ((0, 0), (0, L)))
        up = (lambda x, *d: x.permute(*d))(u, 0, 2, 1)
        up = _pad(up, ((0, 0), (0, 0), (0, L)))
        Kf = (lambda x, axes=(-2,-1): torch.fft.rfft2(x.float(), dim=axes))(Kp[:, None, :], axes=(-2, -1))
        Uf = (lambda x, axes=(-2,-1): torch.fft.rfft2(x.float(), dim=axes))(up[:, :, None, :], axes=(-2, -1))
        Yf = Uf * Kf[None, :, :, :]
        y = (lambda x, s, axes=(-2,-1): torch.fft.irfft2(x, s=s, dim=axes).to(torch.bfloat16))(Yf, (1, L2), axes=(-2, -1))[:, :, 0, :L]
        y = (lambda x, *d: x.permute(*d))(y, 0, 2, 1) + u * Dskip[None, None, :]
        return y

    def _B_ref(x, w1, b1, w2, b2):
        B, S, D = x.shape
        h = _layernorm(x, axis=-1)
        u = torch.einsum("bsd,sf->bdf", h, w1) + b1
        u = _gelu(u)
        y = torch.einsum("bdf,fs->bds", u, w2) + b2
        return (lambda x, *d: x.permute(*d))(y, 0, 2, 1)

    x = A_u
    xn = _layernorm(x, axis=-1)
    s = _A_ref(xn, A_A_re, A_A_im, A_B_re, A_B_im, A_C_re, A_C_im, A_log_dt, A_Dskip)
    g = _silu(_B_ref(xn, B_w1, B_b1, B_w2, B_b2))
    return x + s * g
```

```python
import re

TRANS = {"v_exp_f32", "v_log_f32", "v_rcp_f32", "v_rsq_f32", "v_sqrt_f32", "v_sin_f32", "v_cos_f32"}

def parse_regs(tok):
    tok = tok.strip()
    tok = re.sub(r"^-", "", tok)
    m = re.match(r"^(?:abs\(|\|)?(.*?)(?:\)|\|)?$", tok)
    tok = m.group(1)
    m = re.match(r"^([vsa])\[(\d+):(\d+)\]$", tok)
    if m:
        return {(m.group(1), i) for i in range(int(m.group(2)), int(m.group(3)) + 1)}
    m = re.match(r"^([vsa])(\d+)$", tok)
    if m:
        return {(m.group(1), int(m.group(2)))}
    if tok in ("vcc", "vcc_lo", "vcc_hi"):
        return {("vcc", 0)}
    if tok in ("exec", "exec_lo", "exec_hi"):
        return {("exec", 0)}
    if tok == "m0":
        return {("m0", 0)}
    return set()

def mfma_info(op):
    if "f32_32x32x2_f32" in op: return ("sgemm", 16)
    if "f32_16x16x4_f32" in op: return ("sgemm", 8)
    if "32x32x16" in op or "32x32x8" in op: return ("xdl", 8)
    if "16x16x32" in op or "16x16x16" in op: return ("xdl", 4)
    raise ValueError(op)

class Ins:
    def __init__(self, text):
        self.text = text
        self.nops = 0
        t = text.split(";")[0].strip()
        self.kind = "other"
        self.op = ""
        self.w = set(); self.r = set(); self.rc = set(); self.rab = set()
        self.states = 1
        self.dpp = False
        if not t or t.endswith(":") or t.startswith("."):
            self.kind = "none"; self.states = 0; return
        parts = t.split(None, 1)
        op = parts[0]; self.op = op
        rest = parts[1] if len(parts) > 1 else ""
        ops = [o.strip() for o in rest.split(",")] if rest else []
        mods = ""
        if ops:
            sp = ops[-1].split(None, 1)
            ops[-1] = sp[0]
            mods = sp[1] if len(sp) > 1 else ""
        self.mods = mods
        R = [parse_regs(o) for o in ops]
        if op == "s_nop":
            self.kind = "nop"; self.states = int(ops[0], 0) + 1; return
        if op.startswith("v_mfma"):
            self.kind = "mfma"; self.cls, self.passes = mfma_info(op)
            self.w = R[0]; self.rab = R[1] | R[2]; self.rc = R[3]; self.r = self.rab | self.rc
            return
        if op.startswith("v_"):
            self.kind = "valu"
            base = op.replace("_e32", "").replace("_e64", "").replace("_dpp", "")
            self.trans = base in TRANS
            self.dpp = ("quad_perm" in mods or "row_" in mods or "_dpp" in op)
            self.permlane = "permlane" in op
            if self.permlane:
                self.w = R[0] | R[1]; self.r = R[0] | R[1]; return
            if base.startswith("v_cmpx"):
                self.w = R[0] | {("exec", 0)}; self.r = set().union(*R[1:]); return
            self.w = R[0]
            self.r = set().union(*R[1:]) if len(R) > 1 else set()
            if base in ("v_add_co_u32", "v_sub_co_u32", "v_addc_co_u32", "v_subrev_co_u32"):
                self.w = R[0] | R[1]; self.r = set().union(*R[2:])
            if base.startswith("v_fmac") or base.startswith("v_pk_fmac") or "d16" in base or base == "v_writelane_b32":
                self.r |= R[0]
            if base == "v_cndmask_b32" and len(ops) == 3:
                self.r |= {("vcc", 0)}
            self.readlane = base in ("v_readlane_b32", "v_readfirstlane_b32")
            return
        if op.startswith("ds_"):
            self.kind = "ds"
            if op.startswith("ds_read") or op.startswith("ds_bpermute") or op.startswith("ds_permute") or op.startswith("ds_swizzle"):
                self.w = R[0]; self.r = set().union(*R[1:]) if len(R) > 1 else set()
                if "d16" in op: self.r |= R[0]
            else:
                self.r = set().union(*R)
            return
        if op.startswith("buffer_") or op.startswith("global_"):
            self.kind = "vmem"
            self.lds = " lds" in (" " + mods)
            if "load" in op and not self.lds:
                self.w = R[0]; self.r = set().union(*R[1:])
            else:
                self.r = set().union(*R)
            self.widestore = ("store" in op and ("x4" in op or "x3" in op))
            if self.widestore:
                self.sdata = R[0] if op.startswith("buffer_") else R[1]
            if self.lds: self.r |= {("m0", 0)}
            return
        if op.startswith("s_"):
            self.kind = "salu"
            if op.startswith("s_cmp") or op.startswith("s_cbranch") or op in ("s_branch", "s_barrier", "s_waitcnt", "s_endpgm", "s_setprio", "s_sleep"):
                self.r = set().union(*R) if R else set()
            else:
                self.w = R[0] if R else set(); self.r = set().union(*R[1:]) if len(R) > 1 else set()
            return

XDL_RAW = {2: 5, 4: 8, 8: 12, 16: 20}
SG_RAW = {2: 4, 4: 6, 8: 10, 16: 18}
XDL_C_OVL = {2: 4, 4: 6, 8: 10, 16: 18}
SG_C_OVL = {2: 2, 4: 4, 8: 8, 16: 16}
XDL_C_WAR = {2: 1, 4: 3, 8: 7, 16: 15}

def need(p, c):
    n = 0
    if p.kind == "valu":
        vw = {x for x in p.w if x[0] in "va"}
        sw = {x for x in p.w if x[0] in ("s", "vcc")}
        if c.kind == "mfma" and vw & c.r: n = max(n, 2)
        if c.kind == "valu":
            if p.trans and not c.trans and vw & c.r: n = max(n, 1)
            if c.dpp and vw & c.r: n = max(n, 2)
            if c.permlane and vw & c.r: n = max(n, 2)
            if getattr(c, "readlane", False) and vw & c.r: n = max(n, 1)
            if sw & c.r: n = max(n, 4 if getattr(c, "readlane", False) else 2)
            if ("exec", 0) in p.w: n = max(n, 5 if c.dpp else 4)
        if c.kind == "vmem" and sw & c.r: n = max(n, 5)
        if c.kind == "salu" and sw & c.r: n = max(n, 2)
        if c.kind == "mfma" and ("exec", 0) in p.w: n = max(n, 4)
    if p.kind == "mfma":
        raw = XDL_RAW if p.cls == "xdl" else SG_RAW
        if c.kind in ("valu", "vmem", "ds") and (p.w & (c.r | c.w)): n = max(n, raw[p.passes])
        if c.kind == "mfma":
            if p.w & c.rab: n = max(n, raw[p.passes])
            if p.w & c.rc:
                if p.w == c.rc and p.op == c.op: n = max(n, 2 if p.passes == 2 else 0)
                else: n = max(n, (XDL_C_OVL if p.cls == "xdl" else SG_C_OVL)[p.passes])
        if p.cls == "xdl" and c.kind == "valu" and (p.rc & c.w): n = max(n, XDL_C_WAR[p.passes])
    if p.kind == "salu" and ("m0", 0) in p.w and c.kind == "vmem" and getattr(c, "lds", False): n = max(n, 1)
    if p.kind == "vmem" and getattr(p, "widestore", False) and (p.sdata & c.w): n = max(n, 2 if c.kind == "valu" else 1)
    return n

class Asm:
    def __init__(self):
        self.root = []; self.stack = [self.root]
    def __call__(self, text):
        for line in text.strip("\n").split("\n"):
            self.stack[-1].append(Ins(line.strip()))
    def loop_begin(self, label):
        l = []; self.stack[-1].append(l); self.stack.append(l); self(label + ":")
    def loop_end(self):
        self.stack.pop()
    def _flat(self, lst, dup):
        out = []
        for x in lst:
            if isinstance(x, list):
                b = self._flat(x, dup)
                out += b + (b if dup else [])
            else:
                out.append(x)
        return out
    def resolve(self):
        seq = self._flat(self.root, True)
        changed = True
        while changed:
            changed = False
            for i, c in enumerate(seq):
                if c.kind in ("none", "nop"): continue
                dist = c.nops
                j = i - 1
                req = 0
                while j >= 0 and dist < 24:
                    p = seq[j]
                    if p.kind not in ("none", "nop"):
                        nn = need(p, c)
                        if nn > dist: req = max(req, nn - dist)
                    dist += p.states + p.nops
                    j -= 1
                if req > 0:
                    c.nops += req; changed = True
    def text(self):
        self.resolve()
        out = []
        for x in self._flat(self.root, False):
            n = x.nops
            while n > 0:
                k = min(n, 16); out.append(f"    s_nop {k-1}"); n -= k
            t = x.text
            out.append(t if (t.endswith(":") or t.startswith(".")) else "    " + t)
        return "\n".join(out) + "\n"
```

```python
import sys
from asmgen import Asm

NAME = "recurrent_scan__ssm_conv_s4__mixer_token_mlp__prompt"
WS_HB = 0
WS_XB = 2 << 20
WS_KR = 4 << 20
WS_G  = 8 << 20
WS_S  = 10 << 20
WS_END = 12 << 20

def kd(name, vgpr, sgpr=96, accum=None):
    accum = accum or ((vgpr + 3) // 4 * 4)
    return f""".section .rodata,"a"
.p2align 6
.amdhsa_kernel {name}
  .amdhsa_next_free_vgpr {vgpr}
  .amdhsa_next_free_sgpr {sgpr}
  .amdhsa_accum_offset {accum}
  .amdhsa_group_segment_fixed_size 0
  .amdhsa_kernarg_size 136
  .amdhsa_user_sgpr_count 2
  .amdhsa_user_sgpr_kernarg_segment_ptr 1
  .amdhsa_system_sgpr_workgroup_id_x 1
  .amdhsa_float_denorm_mode_32 3
.end_amdhsa_kernel
"""

def head(name):
    return f""".text
.globl {name}
.p2align 8
.type {name},@function
{name}:
"""

def wave_allsum(a, regs, tmp):
    for pat in ("quad_perm:[1,0,3,2]", "quad_perm:[2,3,0,1]", "row_half_mirror", "row_mirror"):
        for r in regs:
            a(f"v_add_f32_dpp v{r}, v{r}, v{r} {pat} row_mask:0xf bank_mask:0xf")
    for sw in ("v_permlane16_swap_b32", "v_permlane32_swap_b32"):
        for r, t in zip(regs, tmp):
            a(f"v_mov_b32 v{t}, v{r}")
        for r, t in zip(regs, tmp):
            a(f"{sw} v{r}, v{t}")
        for r, t in zip(regs, tmp):
            a(f"v_add_f32 v{r}, v{r}, v{t}")

def gen_prep():
    a = Asm()
    a("s_cmp_ge_u32 s2, 512")
    a("s_cbranch_scc1 L_prep_done")
    a("s_cmp_ge_u32 s2, 256")
    a("s_cbranch_scc1 L_ln")
    a("s_load_dwordx4 s[4:7], s[0:1], 8")
    a("s_load_dwordx4 s[8:11], s[0:1], 24")
    a("s_load_dwordx4 s[12:15], s[0:1], 40")
    a("s_load_dwordx2 s[16:17], s[0:1], 56")
    a("s_load_dwordx2 s[18:19], s[0:1], 128")
    a("v_lshrrev_b32 v2, 6, v0")
    a("v_and_b32 v1, 63, v0")
    a("v_readfirstlane_b32 s20, v2")
    a("s_lshr_b32 s21, s20, 1")
    a("s_and_b32 s22, s20, 1")
    a("s_lshl_b32 s23, s2, 1")
    a("s_add_u32 s23, s23, s21")
    a("s_lshl_b32 s24, s23, 8")
    a("s_lshl_b32 s25, s22, 7")
    a("s_add_u32 s24, s24, s25")
    a("v_lshl_add_u32 v2, v1, 1, s24")
    a("s_lshl_b32 s25, s23, 1")
    a("v_mov_b32 v3, s25")
    a("s_waitcnt lgkmcnt(0)")
    a("global_load_ushort v10, v3, s[16:17]")
    a("global_load_ushort v4, v2, s[4:5]")
    a("global_load_ushort v5, v2, s[6:7]")
    a("global_load_ushort v6, v2, s[8:9]")
    a("global_load_ushort v7, v2, s[10:11]")
    a("global_load_ushort v8, v2, s[12:13]")
    a("global_load_ushort v9, v2, s[14:15]")
    a("v_and_b32 v20, 15, v1")
    a("v_lshlrev_b32 v21, 3, v20")
    a("v_cvt_f32_u32 v24, v21")
    a("v_lshrrev_b32 v21, 3, v20")
    a("v_lshlrev_b32 v21, 7, v21")
    a("v_and_b32 v22, 7, v20")
    a("v_add_u32 v28, v21, v22")
    a("v_lshrrev_b32 v21, 2, v20")
    a("v_lshlrev_b32 v21, 7, v21")
    a("v_and_b32 v22, 3, v20")
    a("v_lshl_add_u32 v21, v22, 1, v21")
    a("v_add_u32 v21, 256, v21")
    a("v_bfe_u32 v22, v20, 1, 2")
    a("v_lshlrev_b32 v22, 7, v22")
    a("v_and_b32 v23, 1, v20")
    a("v_lshl_add_u32 v22, v23, 2, v22")
    a("v_add_u32 v22, 512, v22")
    a("v_cmp_gt_u32 vcc, 8, v20")
    a("v_cndmask_b32 v29, v22, v21, vcc")
    a("v_lshlrev_b32 v21, 7, v20")
    a("v_add_u32 v21, 1024, v21")
    a("v_min_u32 v30, 2048, v21")
    a("v_cvt_f32_u32 v25, v28")
    a("v_cvt_f32_u32 v26, v29")
    a("v_cvt_f32_u32 v27, v30")
    a("s_mov_b32 s26, 0x3fb8aa3b")
    a("s_mov_b32 s27, 0x32a57060")
    a("s_mov_b32 s28, 0x3f317218")
    a("s_mov_b32 s29, 0x3e22f983")
    a("s_waitcnt vmcnt(6)")
    a("v_lshlrev_b32 v10, 16, v10")
    a("v_mul_f32 v11, s26, v10")
    a("v_fma_f32 v12, v10, s26, -v11")
    a("v_fma_f32 v12, v10, s27, v12")
    a("v_exp_f32 v13, v11")
    a("v_mul_f32 v12, s28, v12")
    a("v_fma_f32 v13, v13, v12, v13")
    a("v_cvt_pk_bf16_f32 v13, v13, v13")
    a("v_lshlrev_b32 v13, 16, v13")
    a("s_waitcnt vmcnt(0)")
    for r in range(4, 10):
        a(f"v_lshlrev_b32 v{r}, 16, v{r}")
    a("v_mul_f32 v4, v13, v4")
    a("v_mul_f32 v5, v13, v5")
    a("v_mul_f32 v6, v13, v6")
    a("v_mul_f32 v7, v13, v7")
    a("v_mul_f32 v32, s26, v4")
    a("v_mul_f32 v33, s29, v5")
    a("v_mul_f32 v34, v9, v7")
    a("v_fma_f32 v34, v8, v6, -v34")
    a("v_mul_f32 v35, v9, v6")
    a("v_fma_f32 v35, v8, v7, v35")
    a("s_lshl_b32 s30, s20, 10")
    a("v_lshl_add_u32 v14, v1, 4, s30")
    a("ds_write_b128 v14, v[32:35]")
    a("v_lshrrev_b32 v15, 4, v1")
    a("v_lshl_add_u32 v14, v15, 4, s30")
    a("s_waitcnt lgkmcnt(0)")
    for t in range(16):
        a(f"ds_read_b128 v[{64+4*t}:{67+4*t}], v14 offset:{64*t}")
    for r in range(12):
        a(f"v_mov_b32 v{40+r}, 0")
    for t in range(16):
        pa, pb, pr, pi = 64 + 4 * t, 65 + 4 * t, 66 + 4 * t, 67 + 4 * t
        a(f"s_waitcnt lgkmcnt({15 - t})")
        T = [128, 132, 136, 140]
        for e, fr in enumerate((24, 25, 26, 27)):
            b = T[e]
            a(f"v_mul_f32 v{b}, v{pa}, v{fr}")
            a(f"v_mul_f32 v{b+1}, v{pb}, v{fr}")
        for e in range(4):
            b = T[e]
            a(f"v_exp_f32 v{b}, v{b}")
            a(f"v_fract_f32 v{b+1}, v{b+1}")
        for e in range(4):
            b = T[e]
            a(f"v_cos_f32 v{b+2}, v{b+1}")
            a(f"v_sin_f32 v{b+3}, v{b+1}")
        a(f"v_mul_f32 v144, v{pi}, v131")
        a(f"v_mul_f32 v145, v{pi}, v130")
        a(f"v_fma_f32 v144, v{pr}, v130, -v144")
        a(f"v_fma_f32 v145, v{pr}, v131, v145")
        a(f"v_mul_f32 v144, v128, v144")
        a(f"v_mul_f32 v145, -v128, v145")
        for e in range(1, 4):
            b = T[e]
            a(f"v_mul_f32 v{b+2}, v{b}, v{b+2}")
            a(f"v_mul_f32 v{b+3}, v{b}, v{b+3}")
        for e in range(1, 4):
            b = T[e]; c = 40 + 4 * (e - 1)
            a(f"v_mfma_f32_16x16x4_f32 v[{c}:{c+3}], v144, v{b+2}, v[{c}:{c+3}]")
            a(f"v_mfma_f32_16x16x4_f32 v[{c}:{c+3}], v145, v{b+3}, v[{c}:{c+3}]")
    a("s_mul_i32 s31, s21, 3072")
    a("s_add_u32 s31, s31, 4096")
    a("v_lshl_add_u32 v14, v1, 4, s31")
    a("s_mul_i32 s33, s21, 4352")
    a("s_add_u32 s33, s33, 10240")
    a("s_cmp_eq_u32 s22, 0")
    a("s_cbranch_scc1 L_kg_skipw")
    for tl in range(3):
        a(f"ds_write_b128 v14, v[{40+4*tl}:{43+4*tl}] offset:{1024*tl}")
    a("s_waitcnt lgkmcnt(0)")
    a("L_kg_skipw:")
    a("s_barrier")
    a("s_cmp_eq_u32 s22, 1")
    a("s_cbranch_scc1 L_kg_skipr")
    for tl in range(3):
        a(f"ds_read_b128 v[{52+4*tl}:{55+4*tl}], v14 offset:{1024*tl}")
    a("v_lshlrev_b32 v16, 5, v15")
    for tl, pr_ in enumerate((28, 29, 30)):
        a(f"v_add_u32 v{17+tl}, v16, v{pr_}")
        a(f"v_lshl_add_u32 v{17+tl}, v{17+tl}, 1, s33")
    a("s_waitcnt lgkmcnt(0)")
    for r in range(12):
        a(f"v_add_f32 v{40+r}, v{40+r}, v{52+r}")
    for r in range(0, 12, 2):
        a(f"v_cvt_pk_bf16_f32 v{52+r//2}, v{40+r}, v{41+r}")
    for tl in range(3):
        a(f"ds_write_b16 v{17+tl}, v{52+2*tl}")
        a(f"ds_write_b16_d16_hi v{17+tl}, v{52+2*tl} offset:16")
        a(f"ds_write_b16 v{17+tl}, v{53+2*tl} offset:32")
        a(f"ds_write_b16_d16_hi v{17+tl}, v{53+2*tl} offset:48")
    a("s_waitcnt lgkmcnt(0)")
    a("L_kg_skipr:")
    a("s_barrier")
    a("s_lshl_b32 s34, s22, 7")
    a("v_add_u32 v16, s34, v1")
    a("v_lshlrev_b32 v17, 3, v16")
    a("v_sub_u32 v17, 2047, v17")
    for i2 in range(2):
        for j in range(0, 8, 2):
            a(f"v_subrev_u32 v18, {512*i2+j}, v17")
            a(f"v_subrev_u32 v19, {512*i2+j+1}, v17")
            a("v_cvt_f32_u32 v18, v18")
            a("v_cvt_f32_u32 v19, v19")
            a("v_cvt_pk_bf16_f32 v18, v18, v19")
            a("v_and_b32 v19, 0xffff0000, v18")
            a("v_lshlrev_b32 v18, 16, v18")
            a("v_cvt_u32_f32 v18, v18")
            a("v_cvt_u32_f32 v19, v19")
            a(f"v_lshl_add_u32 v{64+8*i2+j}, v18, 1, s33")
            a(f"v_lshl_add_u32 v{65+8*i2+j}, v19, 1, s33")
    for i2 in range(2):
        for j in range(8):
            a(f"ds_read_u16 v{64+8*i2+j}, v{64+8*i2+j}")
    a("s_lshl_b32 s35, s23, 12")
    a(f"s_add_u32 s35, s35, {WS_KR}")
    a("v_lshl_add_u32 v16, v16, 4, s35")
    a("s_waitcnt lgkmcnt(0)")
    for i2 in range(2):
        for j in range(0, 8, 2):
            a(f"v_lshl_or_b32 v{52+4*i2+j//2}, v{65+8*i2+j}, 16, v{64+8*i2+j}")
    a("global_store_dwordx4 v16, v[52:55], s[18:19]")
    a("global_store_dwordx4 v16, v[56:59], s[18:19] offset:1024")
    a("s_endpgm")
    a("L_ln:")
    a("s_load_dwordx2 s[4:5], s[0:1], 0")
    a("s_load_dwordx2 s[18:19], s[0:1], 128")
    a("s_sub_u32 s3, s2, 256")
    a("v_lshrrev_b32 v2, 6, v0")
    a("v_and_b32 v1, 63, v0")
    a("v_readfirstlane_b32 s20, v2")
    a("s_lshl_b32 s21, s3, 13")
    a("s_lshl_b32 s22, s20, 11")
    a("s_add_u32 s21, s21, s22")
    a("v_lshl_add_u32 v2, v1, 4, s21")
    a("s_mov_b32 s24, 0x3b000000")
    a("s_mov_b32 s25, 0x3727c5ac")
    a("s_waitcnt lgkmcnt(0)")
    a("global_load_dwordx4 v[4:7], v2, s[4:5]")
    a("global_load_dwordx4 v[8:11], v2, s[4:5] offset:1024")
    a("s_mul_i32 s23, s20, 2176")
    a("v_lshl_add_u32 v3, v1, 4, s23")
    a("s_waitcnt vmcnt(0)")
    def unpack(src, dst):
        for i in range(4):
            a(f"v_lshlrev_b32 v{dst+2*i}, 16, v{src+i}")
            a(f"v_and_b32 v{dst+2*i+1}, 0xffff0000, v{src+i}")
    unpack(4, 16); unpack(8, 24)
    for ps in range(2):
        for b, s in ((16, 32), (24, 33)):
            a(f"v_add_f32 v{s}, v{b}, v{b+1}")
            for i in range(2, 8):
                a(f"v_add_f32 v{s}, v{s}, v{b+i}")
        wave_allsum(a, [32, 33], [34, 35])
        a("v_mul_f32 v32, s24, v32")
        a("v_mul_f32 v33, s24, v33")
        for b, m, s in ((16, 32, 36), (24, 33, 37)):
            for i in range(8):
                a(f"v_sub_f32 v{40+i}, v{b+i}, v{m}")
            a(f"v_mul_f32 v{s}, v40, v40")
            for i in range(1, 8):
                a(f"v_fma_f32 v{s}, v{40+i}, v{40+i}, v{s}")
        wave_allsum(a, [36, 37], [34, 35])
        a("v_mul_f32 v36, s24, v36")
        a("v_mul_f32 v37, s24, v37")
        a("v_cvt_pk_bf16_f32 v32, v32, v33")
        a("v_cvt_pk_bf16_f32 v36, v36, v37")
        a("v_and_b32 v33, 0xffff0000, v32")
        a("v_lshlrev_b32 v32, 16, v32")
        a("v_and_b32 v37, 0xffff0000, v36")
        a("v_lshlrev_b32 v36, 16, v36")
        a("v_add_f32 v36, s25, v36")
        a("v_add_f32 v37, s25, v37")
        a("v_cvt_pk_bf16_f32 v36, v36, v37")
        a("v_and_b32 v37, 0xffff0000, v36")
        a("v_lshlrev_b32 v36, 16, v36")
        a("v_sqrt_f32 v36, v36")
        a("v_sqrt_f32 v37, v37")
        a("v_cvt_pk_bf16_f32 v36, v36, v37")
        a("v_and_b32 v37, 0xffff0000, v36")
        a("v_lshlrev_b32 v36, 16, v36")
        a("v_rcp_f32 v36, v36")
        a("v_rcp_f32 v37, v37")
        for b, m, rs, pk in ((16, 32, 36, 48), (24, 33, 37, 52)):
            for i in range(8):
                a(f"v_sub_f32 v{40+i}, v{b+i}, v{m}")
            for i in range(4):
                a(f"v_cvt_pk_bf16_f32 v{pk+i}, v{40+2*i}, v{41+2*i}")
            unpack(pk, 40)
            for i in range(8):
                a(f"v_mul_f32 v{40+i}, v{40+i}, v{rs}")
            for i in range(4):
                a(f"v_cvt_pk_bf16_f32 v{pk+i}, v{40+2*i}, v{41+2*i}")
            if ps == 0:
                unpack(pk, b)
        a(f"ds_write_b128 v3, v[48:51] offset:{8704*ps}")
        a(f"ds_write_b128 v3, v[52:55] offset:{8704*ps+1088}")
    a("s_waitcnt lgkmcnt(0)")
    a("s_barrier")
    a("v_and_b32 v4, 0xf0, v0")
    a("v_and_b32 v5, 3, v0")
    a("v_lshl_add_u32 v4, v5, 2, v4")
    a("v_lshlrev_b32 v4, 1, v4")
    a("v_bfe_u32 v5, v0, 2, 2")
    a("v_mul_u32_u24 v5, 1088, v5")
    a("v_add_u32 v4, v4, v5")
    for arr in range(2):
        for hf in range(2):
            d = 8 + 8 * arr + 4 * hf
            a(f"ds_read_b64_tr_b16 v[{d}:{d+1}], v4 offset:{8704*arr+512*hf}")
            a(f"ds_read_b64_tr_b16 v[{d+2}:{d+3}], v4 offset:{8704*arr+512*hf+4352}")
    a("s_lshl_b32 s21, s3, 13")
    a("v_lshl_add_u32 v5, v0, 4, s21")
    a(f"v_add_u32 v6, {WS_XB}, v5")
    a(f"v_add_u32 v7, {WS_XB+4096}, v5")
    a(f"v_add_u32 v24, {WS_HB+4096}, v5")
    a("s_waitcnt lgkmcnt(0)")
    a("global_store_dwordx4 v6, v[8:11], s[18:19]")
    a("global_store_dwordx4 v7, v[12:15], s[18:19]")
    a("global_store_dwordx4 v5, v[16:19], s[18:19]")
    a("global_store_dwordx4 v24, v[20:23], s[18:19]")
    a("L_prep_done:")
    a("s_endpgm")
    return head("prep_kernel") + a.text() + kd("prep_kernel", 152)


def gemm_body(a, which, S):
    pitch = 3584 if which == 1 else 4096
    KK = 2048 if which == 1 else 1792
    NIT = KK // 64
    act_off = WS_HB if which == 1 else WS_G
    L = f"g{which}"
    a(f"s_load_dwordx4 s[12:15], s[0:1], {80 if which == 1 else 96}")
    a("s_load_dwordx2 s[18:19], s[0:1], 128")
    if which == 2:
        a("s_load_dwordx2 s[16:17], s[0:1], 0")
        a("s_load_dwordx2 s[20:21], s[0:1], 112")
    a("v_lshrrev_b32 v2, 6, v0")
    a("v_and_b32 v1, 63, v0")
    a("v_readfirstlane_b32 s22, v2")
    a("s_and_b32 s23, s22, 1")
    a("s_lshr_b32 s24, s22, 1")
    a("v_lshrrev_b32 v2, 3, v1")
    a("s_lshl_b32 s25, s22, 4")
    a("v_add_u32 v2, s25, v2")
    a(f"v_mul_u32_u24 v2, {pitch}, v2")
    a("v_and_b32 v3, 7, v1")
    a("v_bfe_u32 v4, v1, 4, 1")
    a("v_lshlrev_b32 v4, 2, v4")
    a("v_xor_b32 v3, v3, v4")
    a("v_lshl_add_u32 v2, v3, 4, v2")
    a("s_lshl_b32 s25, s30, 7")
    a("v_add_u32 v10, s25, v2")
    a(f"v_add_u32 v11, {8*pitch}, v10")
    a("s_lshl_b32 s25, s22, 14")
    a("s_lshl_b32 s26, s31, 10")
    a("s_add_u32 s25, s25, s26")
    a("v_lshl_add_u32 v12, v1, 4, s25")
    a("v_add_u32 v13, 8192, v12")
    a("v_lshrrev_b32 v2, 5, v1")
    a("v_lshlrev_b32 v2, 3, v2")
    a("v_bfe_u32 v3, v1, 2, 2")
    a("v_add_u32 v2, v2, v3")
    a("v_lshlrev_b32 v2, 7, v2")
    a("v_bfe_u32 v4, v1, 4, 1")
    a("v_lshlrev_b32 v4, 1, v4")
    a("v_bfe_u32 v5, v1, 1, 1")
    a("v_add_u32 v4, v4, v5")
    a("s_lshl_b32 s25, s23, 2")
    a("v_add_u32 v4, s25, v4")
    a("v_bfe_u32 v5, v1, 3, 1")
    a("v_lshlrev_b32 v5, 2, v5")
    a("v_xor_b32 v4, v4, v5")
    a("v_lshl_add_u32 v2, v4, 4, v2")
    a("v_and_b32 v5, 1, v1")
    a("v_lshl_add_u32 v14, v5, 3, v2")
    a("v_lshrrev_b32 v2, 5, v1")
    a("v_lshlrev_b32 v2, 10, v2")
    a("v_and_b32 v3, 31, v1")
    a("v_lshl_add_u32 v2, v3, 4, v2")
    a("s_lshl_b32 s25, s24, 9")
    a("s_add_u32 s25, s25, 8192")
    a("v_add_u32 v15, s25, v2")
    a("v_lshrrev_b32 v2, 5, v1")
    a("s_lshl_b32 s25, s30, 7")
    a("s_lshl_b32 s26, s23, 6")
    a("s_add_u32 s25, s25, s26")
    a("v_lshl_add_u32 v6, v2, 3, s25")
    for r in range(16):
        a(f"v_mov_b32 v{16+r}, 0")
    a("s_waitcnt lgkmcnt(0)")
    a("s_mov_b32 s4, s12")
    a("s_mov_b32 s5, s13")
    a(f"s_mov_b32 s6, {KK*pitch}")
    a("s_mov_b32 s7, 0x00020000")
    a(f"s_add_u32 s8, s18, {act_off}")
    a("s_addc_u32 s9, s19, 0")
    a(f"s_mov_b32 s10, {KK//8*8192}")
    a("s_mov_b32 s11, 0x00020000")
    a("s_lshl_b32 s27, s22, 11")
    a("s_mov_b32 s32, 0")
    a("s_mov_b32 s33, 0")
    def dma(slot_sreg_or_const):
        a("s_mov_b32 m0, s34")
        a("buffer_load_dwordx4 v10, s[4:7], s32 offen lds")
        a("s_add_u32 m0, s34, 1024")
        a("buffer_load_dwordx4 v11, s[4:7], s32 offen lds")
        a("s_add_u32 m0, s34, 8192")
        a("buffer_load_dwordx4 v12, s[8:11], s33 offen lds")
        a("s_add_u32 m0, s34, 9216")
        a("buffer_load_dwordx4 v13, s[8:11], s33 offen lds")
        a(f"s_add_u32 s32, s32, {64*pitch}")
        a("s_add_u32 s33, s33, 65536")
    for st in range(S - 1):
        a(f"s_add_u32 s34, s27, {st*16384}")
        dma(None)
    for blk in range(4):
        a(f"global_load_dwordx2 v[{64+2*blk}:{65+2*blk}], v6, s[14:15] offset:{16*blk}")
    nextra = 4
    if which == 2:
        a("v_and_b32 v3, 31, v1")
        a("s_lshl_b32 s25, s31, 6")
        a("s_lshl_b32 s26, s24, 5")
        a("s_add_u32 s25, s25, s26")
        a("v_add_u32 v3, s25, v3")
        a("v_lshlrev_b32 v3, 7, v3")
        a("v_lshrrev_b32 v2, 5, v1")
        a("v_lshl_add_u32 v3, v2, 3, v3")
        a("s_lshl_b32 s25, s30, 16")
        a("s_lshl_b32 s26, s23, 6")
        a("s_add_u32 s25, s25, s26")
        a(f"s_add_u32 s25, s25, {WS_S}")
        a("v_add_u32 v3, s25, v3")
        for blk in range(4):
            a(f"global_load_dwordx2 v[{72+2*blk}:{73+2*blk}], v3, s[18:19] offset:{16*blk}")
        a("v_and_b32 v3, 15, v1")
        a("s_lshl_b32 s25, s30, 6")
        a("s_lshl_b32 s26, s22, 4")
        a("s_add_u32 s25, s25, s26")
        a("v_add_u32 v3, s25, v3")
        a("v_lshlrev_b32 v3, 10, v3")
        a("v_lshrrev_b32 v2, 4, v1")
        a("v_lshl_add_u32 v3, v2, 4, v3")
        a("s_lshl_b32 s25, s31, 7")
        a("v_add_u32 v7, s25, v3")
        a("global_load_dwordx4 v[80:83], v7, s[16:17]")
        a("global_load_dwordx4 v[84:87], v7, s[16:17] offset:64")
        nextra = 10
    a("s_mov_b32 s35, 0")
    a(f"s_mov_b32 s36, {(S-1)*16384}")
    a("s_mov_b32 s37, 0")
    a(f"s_waitcnt vmcnt({4*(S-2)+nextra})")
    a(f"s_branch L_{L}_entry")
    a.loop_begin(f"L_{L}_loop")
    a(f"s_waitcnt vmcnt({4*(S-2)})")
    a(f"L_{L}_entry:")
    a("s_barrier")
    a("v_add_u32 v8, s35, v14")
    a("v_add_u32 v9, s35, v15")
    for kk in range(4):
        a(f"ds_read_b64_tr_b16 v[{32+4*kk}:{33+4*kk}], v8 offset:{2048*kk}")
        a(f"ds_read_b64_tr_b16 v[{34+4*kk}:{35+4*kk}], v8 offset:{2048*kk+512}")
        a(f"ds_read_b128 v[{48+4*kk}:{51+4*kk}], v9 offset:{2048*kk}")
    a("s_add_u32 s34, s36, s27")
    dma(None)
    a("s_add_u32 s35, s35, 16384")
    a(f"s_cmp_eq_u32 s35, {S*16384}")
    a("s_cselect_b32 s35, 0, s35")
    a("s_add_u32 s36, s36, 16384")
    a(f"s_cmp_eq_u32 s36, {S*16384}")
    a("s_cselect_b32 s36, 0, s36")
    for kk in range(4):
        a(f"s_waitcnt lgkmcnt({9-3*kk})")
        a(f"v_mfma_f32_32x32x16_bf16 v[16:31], v[{32+4*kk}:{35+4*kk}], v[{48+4*kk}:{51+4*kk}], v[16:31]")
    a("s_add_u32 s37, s37, 1")
    a(f"s_cmp_lt_u32 s37, {NIT}")
    a(f"s_cbranch_scc1 L_{L}_loop")
    a.loop_end()
    a("s_waitcnt vmcnt(0)")
    for blk in range(4):
        for h in range(2):
            a(f"v_lshlrev_b32 v{32+4*blk+2*h}, 16, v{64+2*blk+h}")
            a(f"v_and_b32 v{33+4*blk+2*h}, 0xffff0000, v{64+2*blk+h}")
    for i in range(0, 16, 2):
        a(f"v_cvt_pk_bf16_f32 v48, v{16+i}, v{17+i}")
        a(f"v_lshlrev_b32 v{16+i}, 16, v48")
        a(f"v_and_b32 v{17+i}, 0xffff0000, v48")
        a(f"v_add_f32 v{16+i}, v{16+i}, v{32+i}")
        a(f"v_add_f32 v{17+i}, v{17+i}, v{33+i}")
        a(f"v_cvt_pk_bf16_f32 v48, v{16+i}, v{17+i}")
        a(f"v_lshlrev_b32 v{16+i}, 16, v48")
        a(f"v_and_b32 v{17+i}, 0xffff0000, v48")
    if which == 1:
        a("s_mov_b32 s25, 0x3d372713")
        a("s_mov_b32 s26, 0xc0135761")
        for i in range(16):
            a(f"v_mul_f32 v{32+i}, v{16+i}, v{16+i}")
            a(f"v_fma_f32 v{32+i}, v{32+i}, s25, 1.0")
            a(f"v_mul_f32 v{32+i}, v{16+i}, v{32+i}")
            a(f"v_mul_f32 v{32+i}, s26, v{32+i}")
        for i in range(16):
            a(f"v_exp_f32 v{32+i}, v{32+i}")
        for i in range(16):
            a(f"v_add_f32 v{32+i}, 1.0, v{32+i}")
        for i in range(16):
            a(f"v_rcp_f32 v{32+i}, v{32+i}")
        for i in range(16):
            a(f"v_mul_f32 v{16+i}, v{16+i}, v{32+i}")
        for i in range(0, 16, 2):
            a(f"v_cvt_pk_bf16_f32 v{48+i//2}, v{16+i}, v{17+i}")
        a("v_and_b32 v3, 31, v1")
        a("s_lshl_b32 s25, s31, 6")
        a("s_lshl_b32 s26, s24, 5")
        a("s_add_u32 s25, s25, s26")
        a("v_add_u32 v3, s25, v3")
        a("v_lshlrev_b32 v3, 4, v3")
        a("v_lshrrev_b32 v2, 5, v1")
        a("v_lshl_add_u32 v3, v2, 3, v3")
        a("s_lshl_b32 s25, s30, 16")
        a("s_lshl_b32 s26, s23, 15")
        a("s_add_u32 s25, s25, s26")
        a(f"s_add_u32 s25, s25, {WS_G}")
        a("v_add_u32 v3, s25, v3")
        for blk in range(4):
            a(f"global_store_dwordx2 v3, v[{48+2*blk}:{49+2*blk}], s[18:19]")
            if blk < 3:
                a("v_add_u32 v3, 8192, v3")
        a("s_endpgm")
    else:
        a("s_mov_b32 s26, 0xbfb8aa3b")
        for i in range(16):
            a(f"v_mul_f32 v{32+i}, s26, v{16+i}")
        for i in range(16):
            a(f"v_exp_f32 v{32+i}, v{32+i}")
        for i in range(16):
            a(f"v_add_f32 v{32+i}, 1.0, v{32+i}")
        for i in range(16):
            a(f"v_rcp_f32 v{32+i}, v{32+i}")
        for i in range(16):
            a(f"v_mul_f32 v{16+i}, v{16+i}, v{32+i}")
        for i in range(0, 16, 2):
            a(f"v_cvt_pk_bf16_f32 v48, v{16+i}, v{17+i}")
            a(f"v_lshlrev_b32 v{16+i}, 16, v48")
            a(f"v_and_b32 v{17+i}, 0xffff0000, v48")
            a(f"v_lshlrev_b32 v49, 16, v{72+i//2}")
            a(f"v_and_b32 v50, 0xffff0000, v{72+i//2}")
            a(f"v_mul_f32 v{16+i}, v{16+i}, v49")
            a(f"v_mul_f32 v{17+i}, v{17+i}, v50")
            a(f"v_cvt_pk_bf16_f32 v{32+i//2}, v{16+i}, v{17+i}")
        a("v_and_b32 v3, 31, v1")
        a("s_lshl_b32 s25, s24, 5")
        a("v_add_u32 v3, s25, v3")
        a("v_mul_u32_u24 v3, 144, v3")
        a("v_lshrrev_b32 v2, 5, v1")
        a("v_lshl_add_u32 v3, v2, 3, v3")
        a("s_lshl_b32 s25, s23, 6")
        a("v_add_u32 v3, s25, v3")
        a("s_barrier")
        for blk in range(4):
            a(f"ds_write_b64 v3, v[{32+2*blk}:{33+2*blk}] offset:{16*blk}")
        a("v_lshrrev_b32 v2, 4, v1")
        a("v_lshlrev_b32 v2, 3, v2")
        a("v_bfe_u32 v4, v1, 2, 2")
        a("v_add_u32 v2, v2, v4")
        a("v_mul_u32_u24 v2, 144, v2")
        a("v_and_b32 v4, 3, v1")
        a("v_lshl_add_u32 v2, v4, 3, v2")
        a("s_lshl_b32 s25, s22, 5")
        a("v_add_u32 v2, s25, v2")
        a("s_waitcnt lgkmcnt(0)")
        a("s_barrier")
        for q in range(2):
            a(f"ds_read_b64_tr_b16 v[{40+4*q}:{41+4*q}], v2 offset:{32*144*q}")
            a(f"ds_read_b64_tr_b16 v[{42+4*q}:{43+4*q}], v2 offset:{32*144*q+4*144}")
        a("s_waitcnt lgkmcnt(0)")
        for i in range(8):
            a(f"v_lshlrev_b32 v48, 16, v{40+i}")
            a(f"v_and_b32 v49, 0xffff0000, v{40+i}")
            a(f"v_lshlrev_b32 v50, 16, v{80+i}")
            a(f"v_and_b32 v51, 0xffff0000, v{80+i}")
            a(f"v_add_f32 v48, v48, v50")
            a(f"v_add_f32 v49, v49, v51")
            a(f"v_cvt_pk_bf16_f32 v{56+i}, v48, v49")
        a("global_store_dwordx4 v7, v[56:59], s[20:21]")
        a("global_store_dwordx4 v7, v[60:63], s[20:21] offset:64")
        a("s_endpgm")

def conv_body(a):
    a("s_load_dwordx2 s[18:19], s[0:1], 128")
    a("s_load_dwordx2 s[16:17], s[0:1], 64")
    a("v_lshrrev_b32 v2, 6, v0")
    a("v_and_b32 v1, 63, v0")
    a("v_readfirstlane_b32 s22, v2")
    a("s_lshr_b32 s23, s22, 1")
    a("s_and_b32 s24, s22, 1")
    a("s_lshl_b32 s25, s3, 1")
    a("s_add_u32 s25, s25, s23")
    a("s_mul_i32 s26, s23, 9216")
    a("s_lshl_b32 s27, s24, 20")
    a("s_lshl_b32 s28, s25, 4")
    a("s_add_u32 s27, s27, s28")
    a("v_lshl_add_u32 v2, v1, 13, s27")
    a(f"v_add_u32 v3, {64*8192}, v2")
    a("s_lshl_b32 s27, s25, 12")
    a("s_lshl_b32 s28, s24, 11")
    a("s_add_u32 s27, s27, s28")
    a(f"s_add_u32 s27, s27, {WS_KR - WS_XB}")
    a("v_lshl_add_u32 v4, v1, 4, s27")
    a("v_add_u32 v5, 1024, v4")
    a("s_lshl_b32 s27, s25, 1")
    a("v_mov_b32 v6, s27")
    a("v_mov_b32 v8, 0")
    a("v_mov_b32 v9, 0")
    a("s_waitcnt lgkmcnt(0)")
    a(f"s_add_u32 s8, s18, {WS_XB}")
    a("s_addc_u32 s9, s19, 0")
    a(f"s_mov_b32 s10, {4<<20}")
    a("s_mov_b32 s11, 0x00020000")
    a("s_lshl_b32 s28, s24, 11")
    a("s_add_u32 s28, s28, s26")
    a("s_add_u32 m0, s28, 512")
    a("buffer_load_dwordx4 v2, s[8:11], 0 offen lds")
    a("s_add_u32 m0, s28, 1536")
    a("buffer_load_dwordx4 v3, s[8:11], 0 offen lds")
    a("s_add_u32 m0, s28, 4608")
    a("buffer_load_dwordx4 v4, s[8:11], 0 offen lds")
    a("s_add_u32 m0, s28, 5632")
    a("buffer_load_dwordx4 v5, s[8:11], 0 offen lds")
    a("global_load_ushort v7, v6, s[16:17]")
    a("s_mul_i32 s27, s24, 8704")
    a("s_add_u32 s27, s27, s26")
    a("v_lshl_add_u32 v10, v1, 3, s27")
    a("ds_write_b64 v10, v[8:9]")
    a("v_and_b32 v10, 15, v1")
    a("v_lshrrev_b32 v11, 5, v1")
    a("v_bfe_u32 v12, v1, 4, 1")
    a("v_sub_u32 v13, v10, v11")
    a("v_lshlrev_b32 v13, 5, v13")
    a("v_lshl_add_u32 v13, v12, 4, v13")
    a("s_lshl_b32 s27, s24, 6")
    a("s_sub_u32 s27, s26, s27")
    a("s_add_u32 s27, s27, 128")
    a("v_add_u32 v13, s27, v13")
    a("v_lshlrev_b32 v14, 4, v12")
    a("v_lshlrev_b32 v15, 5, v11")
    a("v_sub_u32 v14, v14, v15")
    a("v_lshlrev_b32 v15, 1, v10")
    a("v_sub_u32 v14, v14, v15")
    a("s_add_u32 s27, s27, 4606")
    a("v_add_u32 v14, s27, v14")
    for r in range(32):
        a(f"v_mov_b32 v{16+r}, 0")
    a("s_waitcnt vmcnt(0) lgkmcnt(0)")
    a("s_barrier")
    for idx in range(32):
        a(f"ds_read_b128 v[{80+4*idx}:{83+4*idx}], v13 offset:{128*idx}")
    for c in range(8):
        a(f"ds_read_b128 v[{48+4*c}:{51+4*c}], v14 offset:{128*(31-c)}")
    for c in range(32):
        a(f"s_waitcnt lgkmcnt({min(7, 31-c)})")
        tb = 48 + 4 * (c % 8)
        for A in range(8):
            idx = 4 * A - c + 3
            if idx < 0: continue
            a(f"v_mfma_f32_16x16x32_bf16 v[{16+4*A}:{19+4*A}], v[{tb}:{tb+3}], v[{80+4*idx}:{83+4*idx}], v[{16+4*A}:{19+4*A}]")
        if c + 8 < 32:
            a(f"ds_read_b128 v[{tb}:{tb+3}], v14 offset:{128*(31-c-8)}")
    a("s_lshl_b32 s27, s22, 12")
    a("s_add_u32 s27, s27, 18432")
    a("v_lshl_add_u32 v2, v1, 4, s27")
    a("s_xor_b32 s27, s27, 4096")
    a("v_lshl_add_u32 v3, v1, 4, s27")
    a("s_cmp_eq_u32 s24, 1")
    a("s_cbranch_scc1 L_cv_p1")
    for t in range(4):
        a(f"ds_write_b128 v2, v[{32+4*t}:{35+4*t}] offset:{1024*t}")
    for r in range(16):
        a(f"v_mov_b32 v{48+r}, v{16+r}")
    a("s_branch L_cv_join")
    a("L_cv_p1:")
    a("s_nop 7")
    for t in range(4):
        a(f"ds_write_b128 v2, v[{16+4*t}:{19+4*t}] offset:{1024*t}")
    for r in range(16):
        a(f"v_mov_b32 v{48+r}, v{32+r}")
    a("L_cv_join:")
    a("v_lshrrev_b32 v11, 4, v1")
    a("v_lshlrev_b32 v4, 5, v10")
    a("v_lshl_add_u32 v4, v11, 3, v4")
    a("v_add_u32 v4, s28, v4")
    a("v_lshrrev_b32 v5, 2, v10")
    a("v_lshlrev_b32 v5, 16, v5")
    a("v_and_b32 v6, 3, v10")
    a("v_lshl_add_u32 v5, v6, 5, v5")
    a("v_lshl_add_u32 v5, v11, 3, v5")
    a("s_lshl_b32 s27, s24, 20")
    a("s_lshl_b32 s29, s25, 7")
    a("s_add_u32 s27, s27, s29")
    a(f"s_add_u32 s27, s27, {WS_S}")
    a("v_add_u32 v5, s27, v5")
    a("v_lshlrev_b32 v7, 16, v7")
    a("s_waitcnt lgkmcnt(0)")
    a("s_barrier")
    for t in range(4):
        a(f"ds_read_b128 v[{64+4*t}:{67+4*t}], v3 offset:{1024*t}")
    for t in range(4):
        a(f"ds_read_b64 v[{80+2*t}:{81+2*t}], v4 offset:{512+512*t}")
    a("s_waitcnt lgkmcnt(0)")
    for t in range(4):
        for h in range(2):
            i = 4 * t + 2 * h
            a(f"v_add_f32 v{48+i}, v{48+i}, v{64+i}")
            a(f"v_add_f32 v{49+i}, v{49+i}, v{65+i}")
            a(f"v_cvt_pk_bf16_f32 v8, v{48+i}, v{49+i}")
            a(f"v_lshlrev_b32 v{48+i}, 16, v8")
            a(f"v_and_b32 v{49+i}, 0xffff0000, v8")
            a(f"v_lshlrev_b32 v8, 16, v{80+2*t+h}")
            a(f"v_and_b32 v9, 0xffff0000, v{80+2*t+h}")
            a("v_mul_f32 v8, v8, v7")
            a("v_mul_f32 v9, v9, v7")
            a("v_cvt_pk_bf16_f32 v8, v8, v9")
            a("v_and_b32 v9, 0xffff0000, v8")
            a("v_lshlrev_b32 v8, 16, v8")
            a(f"v_add_f32 v8, v8, v{48+i}")
            a(f"v_add_f32 v9, v9, v{49+i}")
            a(f"v_cvt_pk_bf16_f32 v{88+2*t+h}, v8, v9")
        a(f"global_store_dwordx2 v5, v[{88+2*t}:{89+2*t}], s[18:19]")
        if t < 3:
            a(f"v_add_u32 v5, {4*65536}, v5")
    a("s_endpgm")

def gen_k2(S):
    a = Asm()
    a("s_cmp_ge_u32 s2, 480")
    a("s_cbranch_scc1 L_k2_done")
    a("s_cmp_ge_u32 s2, 224")
    a("s_cbranch_scc1 L_conv")
    a("s_and_b32 s3, s2, 7")
    a("s_lshr_b32 s25, s2, 3")
    a("s_mul_i32 s26, s25, 37")
    a("s_lshr_b32 s26, s26, 8")
    a("s_mul_i32 s27, s26, 7")
    a("s_sub_u32 s25, s25, s27")
    a("s_lshr_b32 s27, s3, 1")
    a("s_mul_i32 s27, s27, 7")
    a("s_add_u32 s30, s27, s25")
    a("s_and_b32 s27, s3, 1")
    a("s_lshl_b32 s27, s27, 2")
    a("s_add_u32 s31, s27, s26")
    gemm_body(a, 1, S)
    a("L_conv:")
    a("s_sub_u32 s3, s2, 224")
    conv_body(a)
    a("L_k2_done:")
    a("s_endpgm")
    return head("mix1_kernel") + a.text() + kd("mix1_kernel", 208)

def gen_k3(S):
    a = Asm()
    a("s_cmp_ge_u32 s2, 256")
    a("s_cbranch_scc1 L_k3_done")
    a("s_and_b32 s3, s2, 7")
    a("s_lshr_b32 s25, s2, 3")
    a("s_and_b32 s26, s25, 3")
    a("s_lshl_b32 s27, s3, 2")
    a("s_add_u32 s30, s27, s26")
    a("s_lshr_b32 s31, s25, 2")
    gemm_body(a, 2, S)
    a("L_k3_done:")
    a("s_endpgm")
    return head("mix2_kernel") + a.text() + kd("mix2_kernel", 96)

def main(out):
    hdr = open("cdna_kernels/" + NAME + ".s.ref").read().split("; Override")[0]
    S2, S3 = 5, 8
    s = hdr
    s += "; @launch kernel=prep_kernel grid=(512,1,1) block=(256,1,1) lds=20480\n"
    s += f"; @launch kernel=mix1_kernel grid=(480,1,1) block=(256,1,1) lds={S2*16384}\n"
    s += f"; @launch kernel=mix2_kernel grid=(256,1,1) block=(256,1,1) lds={S3*16384}\n"
    s += '.amdgcn_target "amdgcn-amd-amdhsa--gfx950"\n'
    s += gen_prep()
    s += gen_k2(S2)
    s += gen_k3(S3)
    open(out, "w").write(s)

if __name__ == "__main__":
    main(sys.argv[1] if len(sys.argv) > 1 else "k.s")
```

```python
import re

TRANS = {"v_exp_f32", "v_log_f32", "v_rcp_f32", "v_rsq_f32", "v_sqrt_f32", "v_sin_f32", "v_cos_f32"}

def parse_regs(tok):
    tok = tok.strip()
    tok = re.sub(r"^-", "", tok)
    m = re.match(r"^(?:abs\(|\|)?(.*?)(?:\)|\|)?$", tok)
    tok = m.group(1)
    m = re.match(r"^([vsa])\[(\d+):(\d+)\]$", tok)
    if m:
        return {(m.group(1), i) for i in range(int(m.group(2)), int(m.group(3)) + 1)}
    m = re.match(r"^([vsa])(\d+)$", tok)
    if m:
        return {(m.group(1), int(m.group(2)))}
    if tok in ("vcc", "vcc_lo", "vcc_hi"):
        return {("vcc", 0)}
    if tok in ("exec", "exec_lo", "exec_hi"):
        return {("exec", 0)}
    if tok == "m0":
        return {("m0", 0)}
    return set()

def mfma_info(op):
    if "f32_32x32x2_f32" in op: return ("sgemm", 16)
    if "f32_16x16x4_f32" in op: return ("sgemm", 8)
    if "32x32x16" in op or "32x32x8" in op: return ("xdl", 8)
    if "16x16x32" in op or "16x16x16" in op: return ("xdl", 4)
    raise ValueError(op)

class Ins:
    def __init__(self, text):
        self.text = text
        self.nops = 0
        t = text.split(";")[0].strip()
        self.kind = "other"
        self.op = ""
        self.w = set(); self.r = set(); self.rc = set(); self.rab = set()
        self.states = 1
        self.dpp = False
        if not t or t.endswith(":") or t.startswith("."):
            self.kind = "none"; self.states = 0; return
        parts = t.split(None, 1)
        op = parts[0]; self.op = op
        rest = parts[1] if len(parts) > 1 else ""
        ops = [o.strip() for o in rest.split(",")] if rest else []
        mods = ""
        if ops:
            sp = ops[-1].split(None, 1)
            ops[-1] = sp[0]
            mods = sp[1] if len(sp) > 1 else ""
        self.mods = mods
        R = [parse_regs(o) for o in ops]
        if op == "s_nop":
            self.kind = "nop"; self.states = int(ops[0], 0) + 1; return
        if op.startswith("v_mfma"):
            self.kind = "mfma"; self.cls, self.passes = mfma_info(op)
            self.w = R[0]; self.rab = R[1] | R[2]; self.rc = R[3]; self.r = self.rab | self.rc
            return
        if op.startswith("v_"):
            self.kind = "valu"
            base = op.replace("_e32", "").replace("_e64", "").replace("_dpp", "")
            self.trans = base in TRANS
            self.dpp = ("quad_perm" in mods or "row_" in mods or "_dpp" in op)
            self.permlane = "permlane" in op
            if self.permlane:
                self.w = R[0] | R[1]; self.r = R[0] | R[1]; return
            if base.startswith("v_cmpx"):
                self.w = R[0] | {("exec", 0)}; self.r = set().union(*R[1:]); return
            self.w = R[0]
            self.r = set().union(*R[1:]) if len(R) > 1 else set()
            if base in ("v_add_co_u32", "v_sub_co_u32", "v_addc_co_u32", "v_subrev_co_u32"):
                self.w = R[0] | R[1]; self.r = set().union(*R[2:])
            if base.startswith("v_fmac") or base.startswith("v_pk_fmac") or "d16" in base or base == "v_writelane_b32":
                self.r |= R[0]
            if base == "v_cndmask_b32" and len(ops) == 3:
                self.r |= {("vcc", 0)}
            self.readlane = base in ("v_readlane_b32", "v_readfirstlane_b32")
            return
        if op.startswith("ds_"):
            self.kind = "ds"
            if op.startswith("ds_read") or op.startswith("ds_bpermute") or op.startswith("ds_permute") or op.startswith("ds_swizzle"):
                self.w = R[0]; self.r = set().union(*R[1:]) if len(R) > 1 else set()
                if "d16" in op: self.r |= R[0]
            else:
                self.r = set().union(*R)
            return
        if op.startswith("buffer_") or op.startswith("global_"):
            self.kind = "vmem"
            self.lds = " lds" in (" " + mods)
            if "load" in op and not self.lds:
                self.w = R[0]; self.r = set().union(*R[1:])
            else:
                self.r = set().union(*R)
            self.widestore = ("store" in op and ("x4" in op or "x3" in op))
            if self.widestore:
                self.sdata = R[0] if op.startswith("buffer_") else R[1]
            if self.lds: self.r |= {("m0", 0)}
            return
        if op.startswith("s_"):
            self.kind = "salu"
            if op.startswith("s_cmp") or op.startswith("s_cbranch") or op in ("s_branch", "s_barrier", "s_waitcnt", "s_endpgm", "s_setprio", "s_sleep"):
                self.r = set().union(*R) if R else set()
            else:
                self.w = R[0] if R else set(); self.r = set().union(*R[1:]) if len(R) > 1 else set()
            return

XDL_RAW = {2: 5, 4: 8, 8: 12, 16: 20}
SG_RAW = {2: 4, 4: 6, 8: 10, 16: 18}
XDL_C_OVL = {2: 4, 4: 6, 8: 10, 16: 18}
SG_C_OVL = {2: 2, 4: 4, 8: 8, 16: 16}
XDL_C_WAR = {2: 1, 4: 3, 8: 7, 16: 15}

def need(p, c):
    n = 0
    if p.kind == "valu":
        vw = {x for x in p.w if x[0] in "va"}
        sw = {x for x in p.w if x[0] in ("s", "vcc")}
        if c.kind == "mfma" and vw & c.r: n = max(n, 2)
        if c.kind == "valu":
            if p.trans and not c.trans and vw & c.r: n = max(n, 1)
            if c.dpp and vw & c.r: n = max(n, 2)
            if c.permlane and vw & c.r: n = max(n, 2)
            if getattr(c, "readlane", False) and vw & c.r: n = max(n, 1)
            if sw & c.r: n = max(n, 4 if getattr(c, "readlane", False) else 2)
            if ("exec", 0) in p.w: n = max(n, 5 if c.dpp else 4)
        if c.kind == "vmem" and sw & c.r: n = max(n, 5)
        if c.kind == "salu" and sw & c.r: n = max(n, 2)
        if c.kind == "mfma" and ("exec", 0) in p.w: n = max(n, 4)
    if p.kind == "mfma":
        raw = XDL_RAW if p.cls == "xdl" else SG_RAW
        if c.kind in ("valu", "vmem", "ds") and (p.w & (c.r | c.w)): n = max(n, raw[p.passes])
        if c.kind == "mfma":
            if p.w & c.rab: n = max(n, raw[p.passes])
            if p.w & c.rc:
                if p.w == c.rc and p.op == c.op: n = max(n, 2 if p.passes == 2 else 0)
                else: n = max(n, (XDL_C_OVL if p.cls == "xdl" else SG_C_OVL)[p.passes])
        if p.cls == "xdl" and c.kind == "valu" and (p.rc & c.w): n = max(n, XDL_C_WAR[p.passes])
    if p.kind == "salu" and ("m0", 0) in p.w and c.kind == "vmem" and getattr(c, "lds", False): n = max(n, 1)
    if p.kind == "vmem" and getattr(p, "widestore", False) and (p.sdata & c.w): n = max(n, 2 if c.kind == "valu" else 1)
    return n

class Asm:
    def __init__(self):
        self.root = []; self.stack = [self.root]
    def __call__(self, text):
        for line in text.strip("\n").split("\n"):
            self.stack[-1].append(Ins(line.strip()))
    nvm = 0; nds = 0
    def vm(self, text):
        self(text); self.nvm += 1; return self.nvm
    def ds(self, text):
        self(text); self.nds += 1; return self.nds
    def wait(self, vm=None, ds=None):
        parts = []
        if vm is not None: parts.append(f"vmcnt({min(63, self.nvm - vm)})")
        if ds is not None: parts.append(f"lgkmcnt({min(15, self.nds - ds)})")
        if parts: self("s_waitcnt " + " ".join(parts))
    def loop_begin(self, label):
        l = []; self.stack[-1].append(l); self.stack.append(l); self(label + ":")
    def loop_end(self):
        self.stack.pop()
    def _flat(self, lst, dup):
        out = []
        for x in lst:
            if isinstance(x, list):
                b = self._flat(x, dup)
                out += b + (b if dup else [])
            else:
                out.append(x)
        return out
    def resolve(self):
        seq = self._flat(self.root, True)
        changed = True
        while changed:
            changed = False
            for i, c in enumerate(seq):
                if c.kind in ("none", "nop"): continue
                dist = c.nops
                j = i - 1
                req = 0
                while j >= 0 and dist < 24:
                    p = seq[j]
                    if p.kind not in ("none", "nop"):
                        nn = need(p, c)
                        if nn > dist: req = max(req, nn - dist)
                    dist += p.states + p.nops
                    j -= 1
                if req > 0:
                    c.nops += req; changed = True
    def text(self):
        self.resolve()
        out = []
        for x in self._flat(self.root, False):
            n = x.nops
            while n > 0:
                k = min(n, 16); out.append(f"    s_nop {k-1}"); n -= k
            t = x.text
            out.append(t if (t.endswith(":") or t.startswith(".")) else "    " + t)
        return "\n".join(out) + "\n"
```

```python
import sys, os
EXP = os.environ.get("EXP", "")
from asmgen import Asm

NAME = "recurrent_scan__ssm_conv_s4__mixer_token_mlp__prompt"
WS_HB = 0
WS_XB = 2 << 20
WS_KR = 4 << 20
WS_G  = 8 << 20
WS_S  = 10 << 20
WS_PROF = 16 << 20

def kd(name, vgpr, sgpr=96, accum=None):
    if "prof" in EXP: sgpr = 100
    accum = accum or ((vgpr + 3) // 4 * 4)
    return f""".section .rodata,"a"
.p2align 6
.amdhsa_kernel {name}
  .amdhsa_next_free_vgpr {vgpr}
  .amdhsa_next_free_sgpr {sgpr}
  .amdhsa_accum_offset {accum}
  .amdhsa_group_segment_fixed_size 0
  .amdhsa_kernarg_size 136
  .amdhsa_user_sgpr_count 2
  .amdhsa_user_sgpr_kernarg_segment_ptr 1
  .amdhsa_system_sgpr_workgroup_id_x 1
  .amdhsa_float_denorm_mode_32 3
.end_amdhsa_kernel
"""

def head(name):
    return f""".text
.globl {name}
.p2align 8
.type {name},@function
{name}:
"""

class Prof:
    def __init__(self, a, kidx):
        self.a = a; self.k = kidx; self.n = 0; self.on = "prof" in EXP
    def stamp(self):
        if not self.on: return
        a = self.a; i = self.n; self.n += 1
        a("s_waitcnt lgkmcnt(0)")
        a(f"s_memrealtime s[{64+4*i}:{65+4*i}]")
        a(f"s_memtime s[{66+4*i}:{67+4*i}]")
        a("s_waitcnt lgkmcnt(0)")
    def flush(self, ws="s[18:19]"):
        if not self.on: return
        a = self.a
        a("v_lshrrev_b32 v124, 6, v0")
        a("s_lshl_b32 s62, s2, 4")
        a("v_add_u32 v124, s62, v124")
        a("v_lshlrev_b32 v124, 6, v124")
        a(f"v_add_u32 v124, {WS_PROF + (self.k << 20)}, v124")
        a("s_getreg_b32 s63, hwreg(HW_REG_XCC_ID)")
        a("v_mov_b32 v125, s63")
        a("s_getreg_b32 s63, hwreg(HW_REG_HW_ID)")
        a("v_mov_b32 v126, s63")
        a(f"global_store_dword v124, v125, {ws} offset:56")
        a(f"global_store_dword v124, v126, {ws} offset:60")
        for i in range(self.n):
            a(f"v_mov_b32 v125, s{64+4*i}")
            a(f"v_mov_b32 v126, s{66+4*i}")
            a(f"global_store_dword v124, v125, {ws} offset:{8*i}")
            a(f"global_store_dword v124, v126, {ws} offset:{8*i+4}")
        self.n = 0

def wave_allsum(a, regs, tmp):
    for pat in ("quad_perm:[1,0,3,2]", "quad_perm:[2,3,0,1]", "row_half_mirror", "row_mirror"):
        for r in regs:
            a(f"v_add_f32_dpp v{r}, v{r}, v{r} {pat} row_mask:0xf bank_mask:0xf")
    for sw in ("v_permlane16_swap_b32", "v_permlane32_swap_b32"):
        for r, t in zip(regs, tmp):
            a(f"v_mov_b32 v{t}, v{r}")
        for r, t in zip(regs, tmp):
            a(f"{sw} v{r}, v{t}")
        for r, t in zip(regs, tmp):
            a(f"v_add_f32 v{r}, v{r}, v{t}")

def unpack(a, src, dst, n=4):
    for i in range(n):
        a(f"v_lshlrev_b32 v{dst+2*i}, 16, v{src+i}")
        a(f"v_and_b32 v{dst+2*i+1}, 0xffff0000, v{src+i}")

def gen_prep():
    a = Asm()
    P = Prof(a, 0)
    a("s_cmp_ge_u32 s2, 256")
    a("s_cbranch_scc1 L_prep_done")
    a("s_add_u32 s2, s2, 256")
    P.stamp()
    a("s_load_dwordx2 s[4:5], s[0:1], 0")
    a("s_load_dwordx2 s[18:19], s[0:1], 128")
    a("s_sub_u32 s3, s2, 256")
    a("s_and_b32 s20, s3, 7")
    a("s_lshr_b32 s3, s3, 3")
    a("s_lshl_b32 s20, s20, 5")
    a("s_add_u32 s3, s3, s20")
    a("s_lshl_b32 s21, s3, 13")
    a("v_lshl_add_u32 v2, v0, 4, s21")
    a("v_lshrrev_b32 v3, 6, v0")
    a("v_and_b32 v1, 63, v0")
    a("s_mov_b32 s24, 0x3b000000")
    a("s_mov_b32 s25, 0x3727c5ac")
    a("s_waitcnt lgkmcnt(0)")
    a("global_load_dwordx4 v[4:7], v2, s[4:5]")
    a("v_mul_u32_u24 v3, 1088, v3")
    a("v_lshl_add_u32 v3, v1, 4, v3")
    a("v_and_b32 v8, 0x1f0, v0")
    a("v_and_b32 v9, 3, v0")
    a("v_lshl_add_u32 v8, v9, 2, v8")
    a("v_lshlrev_b32 v8, 1, v8")
    a("v_bfe_u32 v9, v0, 2, 2")
    a("v_mul_u32_u24 v9, 1088, v9")
    a("v_add_u32 v8, v8, v9")
    a("s_lshr_b32 s20, s3, 3")
    a("s_lshl_b32 s20, s20, 16")
    a("s_and_b32 s22, s3, 7")
    a("s_lshl_b32 s22, s22, 4")
    a("s_add_u32 s20, s20, s22")
    a(f"s_add_u32 s20, s20, {WS_XB}")
    a("v_lshl_add_u32 v9, v0, 7, s20")
    a("s_waitcnt vmcnt(0)")
    P.stamp()
    unpack(a, 4, 16)
    for ps in range(2):
        a("v_add_f32 v32, v16, v17")
        a("v_add_f32 v33, v18, v19")
        a("v_add_f32 v34, v20, v21")
        a("v_add_f32 v35, v22, v23")
        a("v_add_f32 v32, v32, v33")
        a("v_add_f32 v34, v34, v35")
        a("v_add_f32 v32, v32, v34")
        wave_allsum(a, [32], [34])
        a("v_mul_f32 v32, s24, v32")
        for i in range(8):
            a(f"v_sub_f32 v{40+i}, v{16+i}, v32")
        a("v_mul_f32 v36, v40, v40")
        a("v_mul_f32 v37, v41, v41")
        for i in range(2, 8, 2):
            a(f"v_fma_f32 v36, v{40+i}, v{40+i}, v36")
            a(f"v_fma_f32 v37, v{41+i}, v{41+i}, v37")
        a("v_add_f32 v36, v36, v37")
        wave_allsum(a, [36], [34])
        a("v_mul_f32 v36, s24, v36")
        a("v_cvt_pk_bf16_f32 v32, v32, v36")
        a("v_and_b32 v36, 0xffff0000, v32")
        a("v_lshlrev_b32 v32, 16, v32")
        a("v_add_f32 v36, s25, v36")
        a("v_cvt_pk_bf16_f32 v36, v36, v36")
        a("v_lshlrev_b32 v36, 16, v36")
        a("v_sqrt_f32 v36, v36")
        a("v_cvt_pk_bf16_f32 v36, v36, v36")
        a("v_lshlrev_b32 v36, 16, v36")
        a("v_rcp_f32 v36, v36")
        for i in range(8):
            a(f"v_sub_f32 v{40+i}, v{16+i}, v32")
        for i in range(4):
            a(f"v_cvt_pk_bf16_f32 v{48+i}, v{40+2*i}, v{41+2*i}")
        unpack(a, 48, 40)
        for i in range(8):
            a(f"v_mul_f32 v{40+i}, v{40+i}, v36")
        for i in range(4):
            a(f"v_cvt_pk_bf16_f32 v{48+i}, v{40+2*i}, v{41+2*i}")
        if ps == 0:
            unpack(a, 48, 16)
        a(f"ds_write_b128 v3, v[48:51] offset:{8704*ps}")
    a("s_waitcnt lgkmcnt(0)")
    a("s_barrier")
    for arr in range(2):
        d = 52 + 4 * arr
        a(f"ds_read_b64_tr_b16 v[{d}:{d+1}], v8 offset:{8704*arr}")
        a(f"ds_read_b64_tr_b16 v[{d+2}:{d+3}], v8 offset:{8704*arr+4352}")
    a("s_waitcnt lgkmcnt(0)")
    a("global_store_dwordx4 v9, v[52:55], s[18:19]")
    a("global_store_dwordx4 v2, v[56:59], s[18:19]")
    P.stamp()
    P.flush()
    a("L_prep_done:")
    a("s_endpgm")
    return head("prep_kernel") + a.text() + kd("prep_kernel", 128)

def gemm_body(a, which, S, PF=True):
    pitch = 3584 if which == 1 else 4096
    KK = 2048 if which == 1 else 1792
    NIT = KK // 64
    act_off = WS_HB if which == 1 else WS_G
    L = f"g{which}"
    P = Prof(a, which)
    P.stamp()
    a(f"s_load_dwordx4 s[12:15], s[0:1], {80 if which == 1 else 96}")
    a("s_load_dwordx2 s[18:19], s[0:1], 128")
    if which == 2:
        a("s_load_dwordx2 s[16:17], s[0:1], 0")
        a("s_load_dwordx2 s[20:21], s[0:1], 112")
    a("v_and_b32 v1, 63, v0")
    a("s_and_b32 s23, s22, 1")
    a("s_bfe_u32 s24, s22, 0x10001")
    a("s_lshr_b32 s28, s22, 2")
    a("v_lshrrev_b32 v2, 3, v1")
    a("s_lshl_b32 s25, s22, 3")
    a("v_add_u32 v2, s25, v2")
    a(f"v_mul_u32_u24 v2, {pitch}, v2")
    a("v_and_b32 v3, 7, v1")
    a("v_bfe_u32 v4, v1, 4, 1")
    a("v_lshlrev_b32 v4, 2, v4")
    a("v_xor_b32 v3, v3, v4")
    a("v_lshl_add_u32 v2, v3, 4, v2")
    a("s_lshl_b32 s25, s30, 7")
    a("v_add_u32 v10, s25, v2")
    a("s_lshl_b32 s25, s22, 13")
    a("s_lshl_b32 s26, s31, 10")
    a("s_add_u32 s25, s25, s26")
    a("v_lshl_add_u32 v12, v1, 4, s25")
    a("s_lshl_b32 s27, s22, 10")
    a("s_mov_b32 s32, 0")
    a("s_mov_b32 s33, 0")
    a("s_mov_b32 s7, 0x00020000")
    a("s_mov_b32 s11, 0x00020000")
    a(f"s_mov_b32 s6, {KK*pitch}")
    a(f"s_mov_b32 s10, {KK//8*8192}")
    a("s_waitcnt lgkmcnt(0)")
    a("s_mov_b32 s4, s12")
    a("s_mov_b32 s5, s13")
    a(f"s_add_u32 s8, s18, {act_off}")
    a("s_addc_u32 s9, s19, 0")
    def dma():
        a("s_mov_b32 m0, s34")
        a("buffer_load_dwordx4 v10, s[4:7], s32 offen lds")
        a("s_add_u32 m0, s34, 8192")
        a("buffer_load_dwordx4 v12, s[8:11], s33 offen lds")
        a(f"s_add_u32 s32, s32, {64*pitch}")
        a("s_add_u32 s33, s33, 65536")
    for st in range(S - 1):
        a(f"s_add_u32 s34, s27, {st*16384}")
        dma()
    a("v_lshrrev_b32 v2, 5, v1")
    a("v_lshlrev_b32 v2, 3, v2")
    a("v_bfe_u32 v3, v1, 2, 2")
    a("v_add_u32 v2, v2, v3")
    a("v_lshlrev_b32 v2, 7, v2")
    a("v_bfe_u32 v4, v1, 4, 1")
    a("v_lshlrev_b32 v4, 1, v4")
    a("v_bfe_u32 v5, v1, 1, 1")
    a("v_add_u32 v4, v4, v5")
    a("s_lshl_b32 s25, s23, 2")
    a("v_add_u32 v4, s25, v4")
    a("v_bfe_u32 v5, v1, 3, 1")
    a("v_lshlrev_b32 v5, 2, v5")
    a("v_xor_b32 v4, v4, v5")
    a("v_lshl_add_u32 v2, v4, 4, v2")
    a("v_and_b32 v5, 1, v1")
    a("v_lshl_add_u32 v2, v5, 3, v2")
    a("s_lshl_b32 s25, s28, 12")
    a("v_add_u32 v14, s25, v2")
    a("v_lshrrev_b32 v2, 5, v1")
    a("v_lshlrev_b32 v2, 10, v2")
    a("v_and_b32 v3, 31, v1")
    a("v_lshl_add_u32 v2, v3, 4, v2")
    a("s_lshl_b32 s26, s24, 9")
    a("s_add_u32 s25, s25, s26")
    a("s_add_u32 s25, s25, 8192")
    a("v_add_u32 v15, s25, v2")
    a("v_lshrrev_b32 v2, 5, v1")
    a("s_lshl_b32 s25, s30, 7")
    a("s_lshl_b32 s26, s23, 6")
    a("s_add_u32 s25, s25, s26")
    a("s_lshl_b32 s26, s28, 5")
    a("s_add_u32 s25, s25, s26")
    a("v_lshl_add_u32 v6, v2, 3, s25")
    a("global_load_dwordx2 v[64:65], v6, s[14:15]")
    a("global_load_dwordx2 v[66:67], v6, s[14:15] offset:16")
    nextra = 2
    a("v_and_b32 v3, 31, v1")
    a("s_lshl_b32 s25, s31, 6")
    a("s_lshl_b32 s26, s24, 5")
    a("s_add_u32 s25, s25, s26")
    a("v_add_u32 v13, s25, v3")
    if which == 2:
        a("v_lshlrev_b32 v3, 7, v13")
        a("v_lshl_add_u32 v3, v2, 3, v3")
        a("s_lshl_b32 s25, s30, 16")
        a("s_lshl_b32 s26, s23, 6")
        a("s_add_u32 s25, s25, s26")
        a("s_lshl_b32 s26, s28, 5")
        a("s_add_u32 s25, s25, s26")
        a(f"s_add_u32 s25, s25, {WS_S}")
        a("v_add_u32 v3, s25, v3")
        a("global_load_dwordx2 v[68:69], v3, s[18:19]")
        a("global_load_dwordx2 v[70:71], v3, s[18:19] offset:16")
        a("v_and_b32 v3, 15, v1")
        a("s_lshl_b32 s25, s30, 6")
        a("s_and_b32 s26, s22, 3")
        a("s_lshl_b32 s26, s26, 4")
        a("s_add_u32 s25, s25, s26")
        a("v_add_u32 v3, s25, v3")
        a("v_lshlrev_b32 v3, 10, v3")
        a("v_lshrrev_b32 v2, 4, v1")
        a("v_lshl_add_u32 v3, v2, 4, v3")
        a("s_lshl_b32 s25, s31, 7")
        a("s_lshl_b32 s26, s28, 6")
        a("s_add_u32 s25, s25, s26")
        a("v_add_u32 v7, s25, v3")
        a("global_load_dwordx4 v[72:75], v7, s[16:17]")
        nextra = 5
    for r in range(16):
        a(f"v_mov_b32 v{16+r}, 0")
    SETS = [(32, 40), (48, 56)]
    def reads(st):
        A, B = SETS[st]
        a("v_add_u32 v8, s35, v14")
        a("v_add_u32 v9, s35, v15")
        for j in range(2):
            a(f"ds_read_b64_tr_b16 v[{A+4*j}:{A+4*j+1}], v8 offset:{2048*j}")
            a(f"ds_read_b64_tr_b16 v[{A+4*j+2}:{A+4*j+3}], v8 offset:{2048*j+512}")
            a(f"ds_read_b128 v[{B+4*j}:{B+4*j+3}], v9 offset:{2048*j}")
        a("s_add_u32 s35, s35, 16384")
        a(f"s_cmp_eq_u32 s35, {S*16384}")
        a("s_cselect_b32 s35, 0, s35")
    a("s_mov_b32 s35, 0")
    a(f"s_mov_b32 s36, {(S-1)*16384}")
    a("s_mov_b32 s37, 0")
    a("s_mov_b32 s63, 0")
    P.stamp()
    if PF:
        a(f"s_waitcnt vmcnt({2*(S-2)+nextra})")
        a("s_barrier")
        P.stamp()
        reads(0)
    D = S - 3 if PF else S - 2
    AH = 1 if PF else 0
    def iteration(par, do_dma, vm, do_reads=True):
        a(f"s_waitcnt vmcnt({vm})")
        if "nobar" not in EXP: a("s_barrier")
        if do_reads and "nocomp" not in EXP: reads(1 - par if PF else 0)
        if do_dma and "nodma" not in EXP:
            a("s_add_u32 s34, s36, s27")
            dma()
            a("s_add_u32 s36, s36, 16384")
            a(f"s_cmp_eq_u32 s36, {S*16384}")
            a("s_cselect_b32 s36, 0, s36")
        if "nocomp" in EXP: return
        A, B = SETS[par if PF else 0]
        if PF:
            a(f"s_waitcnt lgkmcnt({6 if do_reads else 0})")
        for j in range(2):
            if not PF: a(f"s_waitcnt lgkmcnt({3-3*j})")
            a(f"v_mfma_f32_32x32x16_bf16 v[16:31], v[{A+4*j}:{A+4*j+3}], v[{B+4*j}:{B+4*j+3}], v[16:31]")
    R = NIT - S + 1
    it = 0
    npeel = S - 1 - AH
    npeel += npeel % 2
    while it < npeel:
        iteration(it & 1, True, 2 * D + (nextra if it + AH <= S - 2 else 0)); it += 1
    nloop = (R - it) // 2
    a.loop_begin(f"L_{L}_loop")
    iteration(0, True, 2 * D)
    iteration(1, True, 2 * D)
    a("s_add_u32 s37, s37, 1")
    a(f"s_cmp_lt_u32 s37, {nloop}")
    a(f"s_cbranch_scc1 L_{L}_loop")
    a.loop_end()
    it += 2 * nloop
    while it < NIT:
        dm = it < R
        last = min(it + S - 2, NIT - 1)
        vm = 2 * max(0, last - (it + AH))
        iteration(it & 1, dm, vm, do_reads=(it + AH < NIT)); it += 1
    P.stamp()
    if "iters" in EXP:
        a("s_lshl_b32 s62, s2, 3")
        a("s_add_u32 s62, s62, s22")
        a("s_lshl_b32 s62, s62, 8")
        a(f"s_add_u32 s62, s62, {(24<<20) + (which << 20)}")
        a("v_lshl_add_u32 v121, v1, 2, s62")
        a("global_store_dword v121, v120, s[18:19]")
    a("s_lshl_b32 s25, s22, 11")
    a("v_lshl_add_u32 v2, v1, 4, s25")
    a("s_xor_b32 s25, s25, 8192")
    a("v_lshl_add_u32 v3, v1, 4, s25")
    a("s_barrier")
    a("s_cmp_eq_u32 s28, 1")
    a(f"s_cbranch_scc1 L_{L}_kh1")
    a("ds_write_b128 v2, v[24:27]")
    a("ds_write_b128 v2, v[28:31] offset:1024")
    a(f"s_branch L_{L}_khj")
    a(f"L_{L}_kh1:")
    a("s_nop 7")
    a("s_nop 3")
    a("ds_write_b128 v2, v[16:19]")
    a("ds_write_b128 v2, v[20:23] offset:1024")
    for r in range(8):
        a(f"v_mov_b32 v{16+r}, v{24+r}")
    a(f"L_{L}_khj:")
    unpack(a, 64, 32)
    a("s_waitcnt lgkmcnt(0)")
    a("s_barrier")
    a("ds_read_b128 v[40:43], v3")
    a("ds_read_b128 v[44:47], v3 offset:1024")
    a("s_waitcnt lgkmcnt(0)")
    for i in range(8):
        a(f"v_add_f32 v{16+i}, v{16+i}, v{40+i}")
    for i in range(0, 8, 2):
        a(f"v_cvt_pk_bf16_f32 v48, v{16+i}, v{17+i}")
        a(f"v_lshlrev_b32 v{16+i}, 16, v48")
        a(f"v_and_b32 v{17+i}, 0xffff0000, v48")
        a(f"v_add_f32 v{16+i}, v{16+i}, v{32+i}")
        a(f"v_add_f32 v{17+i}, v{17+i}, v{33+i}")
        a(f"v_cvt_pk_bf16_f32 v48, v{16+i}, v{17+i}")
        a(f"v_lshlrev_b32 v{16+i}, 16, v48")
        a(f"v_and_b32 v{17+i}, 0xffff0000, v48")
    if which == 1:
        a("s_mov_b32 s25, 0x3d372713")
        a("s_mov_b32 s26, 0xc0135761")
        for i in range(8):
            a(f"v_mul_f32 v{32+i}, v{16+i}, v{16+i}")
            a(f"v_fma_f32 v{32+i}, v{32+i}, s25, 1.0")
            a(f"v_mul_f32 v{32+i}, v{16+i}, v{32+i}")
            a(f"v_mul_f32 v{32+i}, s26, v{32+i}")
    else:
        a("s_mov_b32 s26, 0xbfb8aa3b")
        for i in range(8):
            a(f"v_mul_f32 v{32+i}, s26, v{16+i}")
    for i in range(8):
        a(f"v_exp_f32 v{32+i}, v{32+i}")
    for i in range(8):
        a(f"v_add_f32 v{32+i}, 1.0, v{32+i}")
    for i in range(8):
        a(f"v_rcp_f32 v{32+i}, v{32+i}")
    for i in range(8):
        a(f"v_mul_f32 v{16+i}, v{16+i}, v{32+i}")
    if which == 1:
        for i in range(0, 8, 2):
            a(f"v_cvt_pk_bf16_f32 v{48+i//2}, v{16+i}, v{17+i}")
        a("v_lshlrev_b32 v3, 4, v13")
        a("v_lshrrev_b32 v2, 5, v1")
        a("v_lshl_add_u32 v3, v2, 3, v3")
        a("s_lshl_b32 s25, s30, 16")
        a("s_lshl_b32 s26, s23, 15")
        a("s_add_u32 s25, s25, s26")
        a("s_lshl_b32 s26, s28, 14")
        a("s_add_u32 s25, s25, s26")
        a(f"s_add_u32 s25, s25, {WS_G}")
        a("v_add_u32 v3, s25, v3")
        a("v_add_u32 v4, 8192, v3")
        a("global_store_dwordx2 v3, v[48:49], s[18:19]")
        a("global_store_dwordx2 v4, v[50:51], s[18:19]")
        P.stamp(); P.flush()
        a("s_endpgm")
    else:
        for i in range(0, 8, 2):
            a(f"v_cvt_pk_bf16_f32 v48, v{16+i}, v{17+i}")
            a(f"v_lshlrev_b32 v{16+i}, 16, v48")
            a(f"v_and_b32 v{17+i}, 0xffff0000, v48")
            a(f"v_lshlrev_b32 v49, 16, v{68+i//2}")
            a(f"v_and_b32 v50, 0xffff0000, v{68+i//2}")
            a(f"v_mul_f32 v{16+i}, v{16+i}, v49")
            a(f"v_mul_f32 v{17+i}, v{17+i}, v50")
            a(f"v_cvt_pk_bf16_f32 v{32+i//2}, v{16+i}, v{17+i}")
        a("v_and_b32 v3, 31, v1")
        a("s_lshl_b32 s25, s24, 5")
        a("v_add_u32 v3, s25, v3")
        a("v_mul_u32_u24 v3, 144, v3")
        a("v_lshrrev_b32 v2, 5, v1")
        a("v_lshl_add_u32 v3, v2, 3, v3")
        a("s_lshl_b32 s25, s23, 6")
        a("s_lshl_b32 s26, s28, 5")
        a("s_add_u32 s25, s25, s26")
        a("s_add_u32 s25, s25, 16384")
        a("v_add_u32 v3, s25, v3")
        a("ds_write_b64 v3, v[32:33]")
        a("ds_write_b64 v3, v[34:35] offset:16")
        a("v_lshrrev_b32 v2, 4, v1")
        a("v_lshlrev_b32 v2, 3, v2")
        a("v_bfe_u32 v4, v1, 2, 2")
        a("v_add_u32 v2, v2, v4")
        a("v_mul_u32_u24 v2, 144, v2")
        a("v_and_b32 v4, 3, v1")
        a("v_lshl_add_u32 v2, v4, 3, v2")
        a("s_and_b32 s25, s22, 3")
        a("s_lshl_b32 s25, s25, 5")
        a(f"s_mul_i32 s26, s28, {32*144}")
        a("s_add_u32 s25, s25, s26")
        a("s_add_u32 s25, s25, 16384")
        a("v_add_u32 v2, s25, v2")
        a("s_waitcnt lgkmcnt(0)")
        a("s_barrier")
        a("ds_read_b64_tr_b16 v[40:41], v2")
        a(f"ds_read_b64_tr_b16 v[42:43], v2 offset:{4*144}")
        a("s_waitcnt lgkmcnt(0)")
        for i in range(4):
            a(f"v_lshlrev_b32 v48, 16, v{40+i}")
            a(f"v_and_b32 v49, 0xffff0000, v{40+i}")
            a(f"v_lshlrev_b32 v50, 16, v{72+i}")
            a(f"v_and_b32 v51, 0xffff0000, v{72+i}")
            a(f"v_add_f32 v48, v48, v50")
            a(f"v_add_f32 v49, v49, v51")
            a(f"v_cvt_pk_bf16_f32 v{56+i}, v48, v49")
        a("global_store_dwordx4 v7, v[56:59], s[20:21]")
        P.stamp(); P.flush()
        a("s_endpgm")

def aux_body(a):
    CH = 26624; RB = 4608; RP = 4416; XO = 4608; KQ = 22272; PB = 2 * CH
    P = Prof(a, 1)
    P.stamp()
    a("s_load_dwordx4 s[4:7], s[0:1], 8")
    a("s_load_dwordx4 s[40:43], s[0:1], 24")
    a("s_load_dwordx4 s[12:15], s[0:1], 40")
    a("s_load_dwordx4 s[16:19], s[0:1], 56")
    a("s_load_dwordx2 s[20:21], s[0:1], 128")
    a("v_and_b32 v1, 63, v0")
    a("s_lshr_b32 s23, s22, 2")
    a("s_and_b32 s24, s22, 3")
    a("s_lshl_b32 s25, s3, 1")
    a("s_add_u32 s25, s25, s23")
    a(f"s_mul_i32 s26, s23, {CH}")
    a("s_lshl_b32 s27, s25, 8")
    a("s_lshl_b32 s28, s24, 6")
    a("s_add_u32 s27, s27, s28")
    a("v_and_b32 v3, 31, v1")
    a("v_lshl_add_u32 v2, v3, 1, s27")
    a("s_lshl_b32 s27, s25, 1")
    a("v_mov_b32 v3, s27")
    a("s_lshl_b32 s27, s24, 19")
    a("s_lshl_b32 s28, s25, 7")
    a("s_add_u32 s27, s27, s28")
    a("v_lshrrev_b32 v12, 3, v1")
    a("v_lshlrev_b32 v12, 16, v12")
    a("v_and_b32 v13, 7, v1")
    a("v_lshl_add_u32 v12, v13, 4, v12")
    a("v_add_u32 v12, s27, v12")
    a("s_lshl_b32 s28, s24, 10")
    a("s_add_u32 s28, s28, s26")
    a(f"s_mov_b32 s10, {2<<20}")
    a("s_mov_b32 s11, 0x00020000")
    a("s_waitcnt lgkmcnt(0)")
    a("global_load_ushort v10, v3, s[16:17]")
    a("global_load_ushort v4, v2, s[4:5]")
    a("global_load_ushort v5, v2, s[6:7]")
    a("global_load_ushort v6, v2, s[40:41]")
    a("global_load_ushort v7, v2, s[42:43]")
    a("global_load_ushort v8, v2, s[12:13]")
    a("global_load_ushort v9, v2, s[14:15]")
    a("global_load_ushort v123, v3, s[18:19]")
    a(f"s_add_u32 s8, s20, {WS_XB}")
    a("s_addc_u32 s9, s21, 0")
    a("s_add_u32 m0, s28, 512")
    a("buffer_load_dwordx4 v12, s[8:11], 0 offen lds")
    a(f"s_add_u32 s33, s26, {KQ}")
    a("v_mov_b32 v12, 0")
    a("v_mov_b32 v13, 0")
    a("v_lshl_add_u32 v14, v1, 3, s26")
    a("ds_write_b64 v14, v[12:13]")
    a("v_and_b32 v20, 15, v1")
    a("v_lshlrev_b32 v21, 3, v20")
    a("v_cvt_f32_u32 v24, v21")
    a("v_lshlrev_b32 v21, 1, v20")
    a("v_add_u32 v21, 240, v21")
    a("v_and_b32 v22, 1, v20")
    a("v_lshlrev_b32 v22, 2, v22")
    a("v_bfe_u32 v23, v20, 1, 1")
    a("v_lshl_add_u32 v22, v23, 8, v22")
    a("v_add_u32 v22, 512, v22")
    a("v_cmp_gt_u32 vcc, 12, v20")
    a("v_cndmask_b32 v21, v22, v21, vcc")
    a("v_cmp_gt_u32 vcc, 8, v20")
    a("v_cndmask_b32 v28, v21, v20, vcc")
    a("v_lshlrev_b32 v21, 7, v20")
    a("v_add_u32 v21, 1024, v21")
    a("v_min_u32 v30, 2048, v21")
    a("v_cvt_f32_u32 v25, v28")
    a("v_cvt_f32_u32 v26, v30")
    a("s_mov_b32 s44, 0x3fb8aa3b")
    a("s_mov_b32 s45, 0x32a57060")
    a("s_mov_b32 s46, 0x3f317218")
    a("s_mov_b32 s47, 0x3e22f983")
    a("s_mov_b32 s48, 0x43000000")
    a("s_lshl_b32 s30, s22, 11")
    a(f"s_add_u32 s30, s30, {PB}")
    a("v_lshl_add_u32 v14, v1, 5, s30")
    a("v_lshrrev_b32 v15, 4, v1")
    a("v_lshl_add_u32 v13, v15, 7, s30")
    a("s_lshl_b32 s34, s24, 6")
    a("v_add_u32 v16, s34, v1")
    a("v_lshlrev_b32 v17, 3, v16")
    a("v_sub_u32 v17, 2047, v17")
    for j in range(0, 12, 2):
        a(f"v_subrev_u32 v18, {j}, v17")
        a(f"v_subrev_u32 v19, {j+1}, v17")
        a("v_cvt_f32_i32 v18, v18")
        a("v_cvt_f32_i32 v19, v19")
        a("v_cvt_pk_bf16_f32 v18, v18, v19")
        a("v_and_b32 v19, 0xffff0000, v18")
        a("v_lshlrev_b32 v18, 16, v18")
        a("v_cvt_i32_f32 v18, v18")
        a("v_cvt_i32_f32 v19, v19")
        if j >= 8:
            a("v_mov_b32 v21, 257")
            a("v_cmp_gt_i32 vcc, 0, v18")
            a("v_cndmask_b32 v18, v18, v21, vcc")
            a("v_cmp_gt_i32 vcc, 0, v19")
            a("v_cndmask_b32 v19, v19, v21, vcc")
        a(f"v_lshl_add_u32 v{112+j}, v18, 1, s33")
        if j + 1 < 11:
            a(f"v_lshl_add_u32 v{113+j}, v19, 1, s33")
    a(f"s_add_u32 s35, s26, {RB}")
    a("v_lshl_add_u32 v16, v16, 4, s35")
    a("v_mov_b32 v21, s33")
    a("ds_write_b16 v21, v12 offset:514")
    for r in range(12):
        a(f"v_mov_b32 v{40+r}, 0")
    a("s_waitcnt vmcnt(8)")
    a("v_lshlrev_b32 v10, 16, v10")
    a("v_mul_f32 v11, s44, v10")
    a("v_fma_f32 v12, v10, s44, -v11")
    a("v_fma_f32 v12, v10, s45, v12")
    a("v_exp_f32 v11, v11")
    a("v_mul_f32 v12, s46, v12")
    a("v_fma_f32 v11, v11, v12, v11")
    a("v_cvt_pk_bf16_f32 v11, v11, v11")
    a("v_lshlrev_b32 v11, 16, v11")
    a("s_waitcnt vmcnt(2)")
    if "fine" not in EXP: P.stamp()
    for r in range(4, 10):
        a(f"v_lshlrev_b32 v{r}, 16, v{r}")
    a("v_mul_f32 v4, v11, v4")
    a("v_mul_f32 v5, v11, v5")
    a("v_mul_f32 v6, v11, v6")
    a("v_mul_f32 v7, v11, v7")
    a("v_mul_f32 v32, s44, v4")
    a("v_mul_f32 v33, s47, v5")
    a("v_mul_f32 v34, v9, v7")
    a("v_fma_f32 v34, v8, v6, -v34")
    a("v_mul_f32 v35, v9, v6")
    a("v_fma_f32 v35, v8, v7, v35")
    a("v_max_f32 v6, abs(v34), abs(v35)")
    for pat in ("quad_perm:[1,0,3,2]", "quad_perm:[2,3,0,1]", "row_half_mirror", "row_mirror"):
        a(f"v_max_f32_dpp v6, v6, v6 {pat} row_mask:0xf bank_mask:0xf")
    a("v_mov_b32 v7, v6")
    a("v_permlane16_swap_b32 v6, v7")
    a("v_max_f32 v6, v6, v7")
    a("v_and_b32 v6, 0x7f800000, v6")
    a("v_max_u32 v6, 0x00800000, v6")
    a("v_min_u32 v38, 0x7e800000, v6")
    a("v_sub_u32 v7, 0x7f000000, v38")
    a("v_mul_f32 v34, v34, v7")
    a("v_mul_f32 v35, v35, v7")
    a("v_mul_f32 v4, s48, v32")
    a("v_mul_f32 v5, s48, v33")
    a("v_exp_f32 v4, v4")
    a("v_fract_f32 v5, v5")
    a("v_cos_f32 v36, v5")
    a("v_sin_f32 v37, v5")
    a("v_mul_f32 v36, v4, v36")
    a("v_mul_f32 v37, v4, v37")
    a("ds_write_b128 v14, v[32:35]")
    a("ds_write_b64 v14, v[36:37] offset:16")
    a("s_waitcnt lgkmcnt(0)")
    NG = 8
    for t in range(NG):
        off = (16 * (t // 4) + (t % 4)) * 32
        a(f"ds_read_b128 v[{64+6*t}:{67+6*t}], v13 offset:{off}")
        a(f"ds_read_b64 v[{68+6*t}:{69+6*t}], v13 offset:{off+16}")
    TT = [6, 7, 8, 9, 10, 11, 12, 17, 18, 19, 21, 22, 23, 27, 29, 31]
    PK = [(52, 56, 60, 2), (104, 108, 32, 36)]
    PK = [(52, 56, 60, 2), (64, 68, 72, 76)]
    for t in range(NG):
        pa, pb, pr, pi, er, ei = [64 + 6 * t + k for k in range(6)]
        T = [TT[0:4], TT[4:8], TT[8:12]]; X = TT[12:14]; Y = TT[14:16]
        kx, ky, ka, kc = [r + (t % 4) for r in PK[t // 4]]
        a(f"s_waitcnt lgkmcnt({2*(NG - 1 - t)})")
        for e, fr in enumerate((24, 25, 26)):
            a(f"v_mul_f32 v{T[e][0]}, v{pa}, v{fr}")
            a(f"v_mul_f32 v{T[e][1]}, v{pb}, v{fr}")
        for e in range(3):
            a(f"v_exp_f32 v{T[e][0]}, v{T[e][0]}")
            a(f"v_fract_f32 v{T[e][1]}, v{T[e][1]}")
        for e in range(3):
            a(f"v_cos_f32 v{T[e][2]}, v{T[e][1]}")
            a(f"v_sin_f32 v{T[e][3]}, v{T[e][1]}")
        a(f"v_mul_f32 v{X[0]}, v{pi}, v{T[0][3]}")
        a(f"v_mul_f32 v{X[1]}, v{pi}, v{T[0][2]}")
        a(f"v_fma_f32 v{X[0]}, v{pr}, v{T[0][2]}, -v{X[0]}")
        a(f"v_fma_f32 v{X[1]}, v{pr}, v{T[0][3]}, v{X[1]}")
        a(f"v_mul_f32 v{X[0]}, v{T[0][0]}, v{X[0]}")
        a(f"v_mul_f32 v{X[1]}, -v{T[0][0]}, v{X[1]}")
        for e in range(1, 3):
            a(f"v_mul_f32 v{T[e][2]}, v{T[e][0]}, v{T[e][2]}")
            a(f"v_mul_f32 v{T[e][3]}, v{T[e][0]}, v{T[e][3]}")
        a(f"v_mul_f32 v{Y[0]}, v{X[0]}, v{er}")
        a(f"v_mul_f32 v{Y[1]}, v{X[1]}, v{er}")
        a(f"v_fma_f32 v{Y[0]}, v{X[1]}, v{ei}, v{Y[0]}")
        a(f"v_fma_f32 v{Y[1]}, -v{X[0]}, v{ei}, v{Y[1]}")
        a(f"v_cvt_pk_f16_f32 v{kx}, v{X[0]}, v{X[1]}")
        a(f"v_cvt_pk_f16_f32 v{ka}, v{T[1][2]}, v{T[1][3]}")
        a(f"v_cvt_pk_f16_f32 v{kc}, v{T[2][2]}, v{T[2][3]}")
        a(f"v_cvt_pk_f16_f32 v{ky}, v{Y[0]}, v{Y[1]}")
        if t % 4 == 3:
            x, y, aa, cc = PK[t // 4]
            a(f"v_mfma_f32_16x16x32_f16 v[40:43], v[{x}:{x+3}], v[{aa}:{aa+3}], v[40:43]")
            a(f"v_mfma_f32_16x16x32_f16 v[44:47], v[{y}:{y+3}], v[{aa}:{aa+3}], v[44:47]")
            a(f"v_mfma_f32_16x16x32_f16 v[48:51], v[{x}:{x+3}], v[{cc}:{cc+3}], v[48:51]")
    P.stamp()
    a(f"s_add_u32 s31, s26, {XO}")
    a("s_mul_i32 s36, s24, 3072")
    a("s_add_u32 s36, s36, s31")
    a("v_lshl_add_u32 v14, v1, 4, s36")
    a("s_lshl_b32 s36, s24, 10")
    a("s_add_u32 s36, s36, s31")
    a("v_lshl_add_u32 v13, v1, 4, s36")
    a("v_lshlrev_b32 v17, 5, v15")
    a("s_lshl_b32 s36, s24, 7")
    a("v_add_u32 v18, s36, v28")
    a("s_cmp_eq_u32 s24, 2")
    a("s_cselect_b64 vcc, -1, 0")
    a("v_cndmask_b32 v18, v18, v30, vcc")
    a("v_add_u32 v18, v17, v18")
    a("v_lshl_add_u32 v18, v18, 1, s33")
    for r in range(12):
        a(f"v_mul_f32 v{40+r}, v{40+r}, v38")
    for tl in range(3):
        a(f"ds_write_b128 v14, v[{40+4*tl}:{43+4*tl}] offset:{1024*tl}")
    a("s_waitcnt lgkmcnt(0)")
    a("s_barrier")
    if "fine" in EXP: P.stamp()
    a("s_cmp_eq_u32 s24, 3")
    a("s_cbranch_scc1 L_kg_skip")
    for q in range(4):
        a(f"ds_read_b128 v[{64+4*q}:{67+4*q}], v13 offset:{3072*q}")
    a("s_waitcnt lgkmcnt(0)")
    for r in range(4):
        a(f"v_add_f32 v{64+r}, v{64+r}, v{68+r}")
        a(f"v_add_f32 v{72+r}, v{72+r}, v{76+r}")
    for r in range(4):
        a(f"v_add_f32 v{64+r}, v{64+r}, v{72+r}")
    a("v_cvt_pk_bf16_f32 v52, v64, v65")
    a("v_cvt_pk_bf16_f32 v53, v66, v67")
    a("ds_write_b16 v18, v52")
    a("ds_write_b16_d16_hi v18, v52 offset:16")
    a("ds_write_b16 v18, v53 offset:32")
    a("ds_write_b16_d16_hi v18, v53 offset:48")
    a("s_waitcnt lgkmcnt(0)")
    a("L_kg_skip:")
    a("s_barrier")
    if "fine" in EXP: P.stamp()
    for j in range(11):
        a(f"ds_read_u16 v{112+j}, v{112+j}")
    a(f"s_mul_i32 s27, s24, {RP}")
    a("s_add_u32 s27, s27, s35")
    a("s_add_u32 s27, s27, 4096")
    a("v_lshl_add_u32 v3, v1, 2, s27")
    a("v_mov_b32 v6, 0")
    a("ds_write_b32 v3, v6")
    a("v_lshrrev_b32 v11, 5, v1")
    a("v_bfe_u32 v12, v1, 4, 1")
    a("v_sub_u32 v13, v20, v11")
    a("v_lshlrev_b32 v13, 5, v13")
    a("v_lshl_add_u32 v13, v12, 4, v13")
    a("s_lshl_b32 s27, s24, 6")
    a("s_sub_u32 s27, s26, s27")
    a("s_add_u32 s29, s27, 256")
    a("v_add_u32 v13, s29, v13")
    a("v_lshlrev_b32 v14, 4, v12")
    a("v_lshlrev_b32 v10, 5, v11")
    a("v_sub_u32 v14, v14, v10")
    a("v_lshlrev_b32 v10, 1, v20")
    a("v_sub_u32 v14, v14, v10")
    a("v_sub_u32 v10, 3, v20")
    a("v_and_b32 v10, 3, v10")
    a(f"v_mov_b32 v11, {RP-2}")
    a("v_mad_u32_u24 v14, v10, v11, v14")
    a(f"s_add_u32 s29, s27, {RB+254}")
    a("v_add_u32 v14, s29, v14")
    a("v_lshlrev_b32 v4, 5, v20")
    a("v_lshl_add_u32 v4, v15, 3, v4")
    a("v_add_u32 v4, s28, v4")
    a("v_lshrrev_b32 v5, 2, v20")
    a("v_lshlrev_b32 v5, 16, v5")
    a("v_and_b32 v6, 3, v20")
    a("v_lshl_add_u32 v5, v6, 5, v5")
    a("v_lshl_add_u32 v5, v15, 3, v5")
    a("s_lshl_b32 s27, s24, 19")
    a("s_lshl_b32 s29, s25, 7")
    a("s_add_u32 s27, s27, s29")
    a(f"s_add_u32 s27, s27, {WS_S}")
    a("v_add_u32 v5, s27, v5")
    a("v_lshl_add_u32 v2, v1, 4, s26")
    a("s_waitcnt lgkmcnt(0)")
    for sft in range(4):
        for k in range(4):
            e = sft + 2 * k
            a(f"v_lshl_or_b32 v{48+4*sft+k}, v{113+e}, 16, v{112+e}")
    for sft in range(4):
        a(f"ds_write_b128 v16, v[{48+4*sft}:{51+4*sft}] offset:{RP*sft}")
    for r in range(32):
        a(f"v_mov_b32 v{16+r}, 0")
    if "fine" in EXP: P.stamp()
    a("s_waitcnt vmcnt(0) lgkmcnt(0)")
    a("v_lshlrev_b32 v7, 16, v123")
    a("s_barrier")
    P.stamp()
    NT = 4
    TB = 48; UB = 64
    def tread(c):
        tb = TB + 4 * (c % NT)
        a(f"ds_read_b64 v[{tb}:{tb+1}], v14 offset:{256*(15-c)}")
        a(f"ds_read_b64 v[{tb+2}:{tb+3}], v14 offset:{256*(15-c)+8}")
    tread(0)
    for idx in range(16):
        a(f"ds_read_b128 v[{UB+4*idx}:{UB+4*idx+3}], v13 offset:{256*idx}")
    for c in range(1, NT):
        tread(c)
    a("ds_read_b64 v[8:9], v4 offset:512")
    a("ds_read_b64 v[10:11], v4 offset:1024")
    for c in range(16):
        n_after = 2 * min(NT - 1, 15 - c) + (2 if c < NT else 0)
        a(f"s_waitcnt lgkmcnt({n_after})")
        tb = TB + 4 * (c % NT)
        for A in range(8):
            idx = 2 * A - c + 1
            if idx < 0: continue
            a(f"v_mfma_f32_16x16x32_bf16 v[{16+4*A}:{19+4*A}], v[{tb}:{tb+3}], v[{UB+4*idx}:{UB+4*idx+3}], v[{16+4*A}:{19+4*A}]")
        if c + NT < 16:
            tread(c + NT)
    a("s_waitcnt lgkmcnt(0)")
    a("s_barrier")
    if "fine" not in EXP: P.stamp()
    for rho in range(4):
        if rho < 3:
            a(f"s_cmp_eq_u32 s24, {rho}")
            a(f"s_cbranch_scc0 L_cv_n{rho}")
        a("s_nop 7")
        for sg in range(4):
            if sg == rho: continue
            k = (rho - sg - 1) & 3
            for t in range(2):
                r = 16 + 8 * sg + 4 * t
                a(f"ds_write_b128 v2, v[{r}:{r+3}] offset:{(sg*3+k)*2048 + 1024*t}")
        for r in range(8):
            a(f"v_mov_b32 v{48+r}, v{16+8*rho+r}")
        if rho < 3:
            a("s_branch L_cv_join")
            a(f"L_cv_n{rho}:")
    a("L_cv_join:")
    a("s_mul_i32 s27, s24, 6144")
    a("v_add_u32 v3, s27, v2")
    a("s_waitcnt lgkmcnt(0)")
    a("s_barrier")
    for k in range(3):
        for t in range(2):
            a(f"ds_read_b128 v[{64+8*k+4*t}:{67+8*k+4*t}], v3 offset:{2048*k+1024*t}")
    a("s_waitcnt lgkmcnt(0)")
    for i in range(8):
        a(f"v_add_f32 v{48+i}, v{48+i}, v{64+i}")
        a(f"v_add_f32 v{72+i}, v{72+i}, v{80+i}")
    for i in range(8):
        a(f"v_add_f32 v{48+i}, v{48+i}, v{72+i}")
    for h in range(4):
        i = 2 * h
        a(f"v_cvt_pk_bf16_f32 v12, v{48+i}, v{49+i}")
        a(f"v_lshlrev_b32 v{48+i}, 16, v12")
        a(f"v_and_b32 v{49+i}, 0xffff0000, v12")
        a(f"v_lshlrev_b32 v12, 16, v{8+h}")
        a(f"v_and_b32 v13, 0xffff0000, v{8+h}")
        a("v_mul_f32 v12, v12, v7")
        a("v_mul_f32 v13, v13, v7")
        a("v_cvt_pk_bf16_f32 v12, v12, v13")
        a("v_and_b32 v13, 0xffff0000, v12")
        a("v_lshlrev_b32 v12, 16, v12")
        a(f"v_add_f32 v12, v12, v{48+i}")
        a(f"v_add_f32 v13, v13, v{49+i}")
        a(f"v_cvt_pk_bf16_f32 v{56+h}, v12, v13")
    a("global_store_dwordx2 v5, v[56:57], s[20:21]")
    a(f"v_add_u32 v5, {4*65536}, v5")
    a("global_store_dwordx2 v5, v[58:59], s[20:21]")
    P.stamp(); P.flush("s[20:21]")
    a("s_endpgm")

def gen_k2(S):
    a = Asm()
    a("s_cmp_ge_u32 s2, 480")
    a("s_cbranch_scc1 L_k2_done")
    a("v_lshrrev_b32 v2, 6, v0")
    a("v_readfirstlane_b32 s22, v2")
    a("s_cmp_ge_u32 s2, 224")
    a("s_cbranch_scc1 L_aux")
    if "nogemm" in EXP: a("s_endpgm")
    a("s_and_b32 s3, s2, 7")
    a("s_lshr_b32 s25, s2, 3")
    a("s_mul_i32 s26, s25, 37")
    a("s_lshr_b32 s26, s26, 8")
    a("s_mul_i32 s27, s26, 7")
    a("s_sub_u32 s25, s25, s27")
    a("s_lshr_b32 s27, s3, 1")
    a("s_mul_i32 s27, s27, 7")
    a("s_add_u32 s30, s27, s25")
    a("s_and_b32 s27, s3, 1")
    a("s_lshl_b32 s27, s27, 2")
    a("s_add_u32 s31, s27, s26")
    gemm_body(a, 1, S, PF=("pf1" in EXP))
    a("L_aux:")
    if "noconv" in EXP: a("s_endpgm")
    a("s_sub_u32 s3, s2, 224")
    aux_body(a)
    a("L_k2_done:")
    a("s_endpgm")
    return head("mix1_kernel") + a.text() + kd("mix1_kernel", 128)

def gen_k3(S):
    a = Asm()
    a("s_cmp_ge_u32 s2, 256")
    a("s_cbranch_scc1 L_k3_done")
    a("v_lshrrev_b32 v2, 6, v0")
    a("v_readfirstlane_b32 s22, v2")
    a("s_and_b32 s3, s2, 7")
    a("s_lshr_b32 s25, s2, 3")
    a("s_and_b32 s26, s25, 7")
    a("s_lshr_b32 s27, s3, 1")
    a("s_lshl_b32 s27, s27, 3")
    a("s_add_u32 s30, s27, s26")
    a("s_lshr_b32 s31, s25, 3")
    a("s_and_b32 s27, s3, 1")
    a("s_lshl_b32 s27, s27, 2")
    a("s_add_u32 s31, s31, s27")
    gemm_body(a, 2, S)
    a("L_k3_done:")
    a("s_endpgm")
    return head("mix2_kernel") + a.text() + kd("mix2_kernel", 128)

def main(out):
    hdr = open("cdna_kernels/" + NAME + ".s.ref").read().split("; Override")[0]
    S2, S3 = int(os.environ.get("S2", 5)), int(os.environ.get("S3", 9))
    s = hdr
    s += "; @launch kernel=prep_kernel grid=(256,1,1) block=(512,1,1) lds=17408\n"
    s += f"; @launch kernel=mix1_kernel grid=(480,1,1) block=(512,1,1) lds={S2*16384}\n"
    s += f"; @launch kernel=mix2_kernel grid=(256,1,1) block=(512,1,1) lds={S3*16384}\n"
    s += '.amdgcn_target "amdgcn-amd-amdhsa--gfx950"\n'
    s += gen_prep()
    s += gen_k2(S2)
    s += gen_k3(S3)
    open(out, "w").write(s)

if __name__ == "__main__":
    main(sys.argv[1] if len(sys.argv) > 1 else "k3.s")
```

```python
import sys, os
EXP = os.environ.get("EXP", "")
from asmgen import Asm

NAME = "recurrent_scan__ssm_conv_s4__mixer_token_mlp__prompt"
WS_HB = 0
WS_XB = 2 << 20
WS_KR = 4 << 20
KRP = 4160
WS_G  = 9 << 20
WS_S  = 11 << 20
WS_PROF = 16 << 20

def kd(name, vgpr, sgpr=96, accum=None):
    if "prof" in EXP: sgpr = 100
    accum = accum or ((vgpr + 3) // 4 * 4)
    return f""".section .rodata,"a"
.p2align 6
.amdhsa_kernel {name}
  .amdhsa_next_free_vgpr {vgpr}
  .amdhsa_next_free_sgpr {sgpr}
  .amdhsa_accum_offset {accum}
  .amdhsa_group_segment_fixed_size 0
  .amdhsa_kernarg_size 136
  .amdhsa_user_sgpr_count 2
  .amdhsa_user_sgpr_kernarg_segment_ptr 1
  .amdhsa_system_sgpr_workgroup_id_x 1
  .amdhsa_float_denorm_mode_32 3
.end_amdhsa_kernel
"""

def head(name):
    return f""".text
.globl {name}
.p2align 8
.type {name},@function
{name}:
"""

class Prof:
    def __init__(self, a, kidx):
        self.a = a; self.k = kidx; self.n = 0; self.on = "prof" in EXP
    def stamp(self):
        if not self.on: return
        a = self.a; i = self.n; self.n += 1
        a("s_waitcnt lgkmcnt(0)")
        a(f"s_memrealtime s[{64+4*i}:{65+4*i}]")
        a(f"s_memtime s[{66+4*i}:{67+4*i}]")
        a("s_waitcnt lgkmcnt(0)")
    def flush(self, ws="s[18:19]"):
        if not self.on: return
        a = self.a
        a("v_lshrrev_b32 v124, 6, v0")
        a("s_lshl_b32 s62, s2, 4")
        a("v_add_u32 v124, s62, v124")
        a("v_lshlrev_b32 v124, 6, v124")
        a(f"v_add_u32 v124, {WS_PROF + (self.k << 20)}, v124")
        a("s_getreg_b32 s63, hwreg(HW_REG_XCC_ID)")
        a("v_mov_b32 v125, s63")
        a("s_getreg_b32 s63, hwreg(HW_REG_HW_ID)")
        a("v_mov_b32 v126, s63")
        a(f"global_store_dword v124, v125, {ws} offset:56")
        a(f"global_store_dword v124, v126, {ws} offset:60")
        for i in range(self.n):
            a(f"v_mov_b32 v125, s{64+4*i}")
            a(f"v_mov_b32 v126, s{66+4*i}")
            a(f"global_store_dword v124, v125, {ws} offset:{8*i}")
            a(f"global_store_dword v124, v126, {ws} offset:{8*i+4}")
        self.n = 0

def wave_allsum(a, regs, tmp):
    for pat in ("quad_perm:[1,0,3,2]", "quad_perm:[2,3,0,1]", "row_half_mirror", "row_mirror"):
        for r in regs:
            a(f"v_add_f32_dpp v{r}, v{r}, v{r} {pat} row_mask:0xf bank_mask:0xf")
    for sw in ("v_permlane16_swap_b32", "v_permlane32_swap_b32"):
        for r, t in zip(regs, tmp):
            a(f"v_mov_b32 v{t}, v{r}")
        for r, t in zip(regs, tmp):
            a(f"{sw} v{r}, v{t}")
        for r, t in zip(regs, tmp):
            a(f"v_add_f32 v{r}, v{r}, v{t}")

def unpack(a, src, dst, n=4):
    for i in range(n):
        a(f"v_lshlrev_b32 v{dst+2*i}, 16, v{src+i}")
        a(f"v_and_b32 v{dst+2*i+1}, 0xffff0000, v{src+i}")

def w_prefetch(a, which, first_id, ptr, vr, tracked=False):
    pitch, ncol, colb = (3584, 7, 896) if which == 1 else (4096, 8, 1024)
    a(f"s_sub_u32 s58, s2, {first_id}")
    a("s_and_b32 s59, s58, 7")
    a("s_lshr_b32 s58, s58, 3")
    a("s_lshl_b32 s58, s58, 6")
    a(f"v_lshrrev_b32 v{vr}, 3, v0")
    a(f"v_add_u32 v{vr}, s58, v{vr}")
    a(f"v_and_b32 v{vr+1}, 7, v0")
    if ncol < 8: a(f"v_min_u32 v{vr+1}, {ncol-1}, v{vr+1}")
    a(f"v_mul_u32_u24 v{vr}, {pitch}, v{vr}")
    a(f"v_lshl_add_u32 v{vr}, v{vr+1}, 7, v{vr}")
    a("s_lshr_b32 s59, s59, 1")
    a(f"s_mul_i32 s59, s59, {colb}")
    a(f"v_add_u32 v{vr}, s59, v{vr}")
    (a.vm if tracked else a)(f"global_load_dword v{vr+2}, v{vr}, {ptr}")

def kgen_body(a):
    CH = 16640; XO = 0; KQ = 12288; PB = 2 * CH
    P = Prof(a, 0)
    P.stamp()
    a("s_load_dwordx4 s[4:7], s[0:1], 8")
    a("s_load_dwordx4 s[40:43], s[0:1], 24")
    a("s_load_dwordx4 s[12:15], s[0:1], 40")
    a("s_load_dwordx4 s[16:19], s[0:1], 56")
    a("s_load_dwordx2 s[20:21], s[0:1], 128")
    a("v_and_b32 v1, 63, v0")
    a("s_lshr_b32 s23, s22, 2")
    a("s_and_b32 s24, s22, 3")
    a("s_lshl_b32 s25, s3, 1")
    a("s_add_u32 s25, s25, s23")
    a(f"s_mul_i32 s26, s23, {CH}")
    a("s_lshl_b32 s27, s25, 8")
    a("s_lshl_b32 s28, s24, 6")
    a("s_add_u32 s27, s27, s28")
    a("v_and_b32 v3, 31, v1")
    a("v_lshl_add_u32 v2, v3, 1, s27")
    a("s_lshl_b32 s27, s25, 1")
    a("v_mov_b32 v3, s27")
    a("s_waitcnt lgkmcnt(0)")
    a("global_load_ushort v10, v3, s[16:17]")
    a("global_load_ushort v4, v2, s[4:5]")
    a("global_load_ushort v5, v2, s[6:7]")
    a("global_load_ushort v6, v2, s[40:41]")
    a("global_load_ushort v7, v2, s[42:43]")
    a("global_load_ushort v8, v2, s[12:13]")
    a("global_load_ushort v9, v2, s[14:15]")
    a(f"s_add_u32 s33, s26, {KQ}")
    a("v_mov_b32 v12, 0")
    a("v_mov_b32 v13, 0")
    a("v_and_b32 v20, 15, v1")
    a("v_lshlrev_b32 v21, 3, v20")
    a("v_cvt_f32_u32 v24, v21")
    a("v_lshlrev_b32 v21, 1, v20")
    a("v_add_u32 v21, 240, v21")
    a("v_and_b32 v22, 1, v20")
    a("v_lshlrev_b32 v22, 2, v22")
    a("v_bfe_u32 v23, v20, 1, 1")
    a("v_lshl_add_u32 v22, v23, 8, v22")
    a("v_add_u32 v22, 512, v22")
    a("v_cmp_gt_u32 vcc, 12, v20")
    a("v_cndmask_b32 v21, v22, v21, vcc")
    a("v_cmp_gt_u32 vcc, 8, v20")
    a("v_cndmask_b32 v28, v21, v20, vcc")
    a("v_lshlrev_b32 v21, 7, v20")
    a("v_add_u32 v21, 1024, v21")
    a("v_min_u32 v30, 2048, v21")
    a("v_cvt_f32_u32 v25, v28")
    a("v_cvt_f32_u32 v26, v30")
    a("s_mov_b32 s44, 0x3fb8aa3b")
    a("s_mov_b32 s45, 0x32a57060")
    a("s_mov_b32 s46, 0x3f317218")
    a("s_mov_b32 s47, 0x3e22f983")
    a("s_mov_b32 s48, 0x43000000")
    a("s_lshl_b32 s30, s22, 11")
    a(f"s_add_u32 s30, s30, {PB}")
    a("v_lshl_add_u32 v14, v1, 5, s30")
    a("v_lshrrev_b32 v15, 4, v1")
    a("v_lshl_add_u32 v13, v15, 7, s30")
    a("s_lshl_b32 s34, s24, 6")
    a("v_add_u32 v16, s34, v1")
    a("v_lshlrev_b32 v17, 3, v16")
    a("v_sub_u32 v17, 2047, v17")
    for j in range(0, 10, 2):
        a(f"v_subrev_u32 v18, {j}, v17")
        a(f"v_subrev_u32 v19, {j+1}, v17")
        a("v_cvt_f32_i32 v18, v18")
        a("v_cvt_f32_i32 v19, v19")
        a("v_cvt_pk_bf16_f32 v18, v18, v19")
        a("v_and_b32 v19, 0xffff0000, v18")
        a("v_lshlrev_b32 v18, 16, v18")
        a("v_cvt_i32_f32 v18, v18")
        a("v_cvt_i32_f32 v19, v19")
        if j >= 8:
            a("v_mov_b32 v21, 257")
            a("v_cmp_gt_i32 vcc, 0, v18")
            a("v_cndmask_b32 v18, v18, v21, vcc")
            a("v_cmp_gt_i32 vcc, 0, v19")
            a("v_cndmask_b32 v19, v19, v21, vcc")
        a(f"v_lshl_add_u32 v{112+j}, v18, 1, s33")
        if j + 1 < 9:
            a(f"v_lshl_add_u32 v{113+j}, v19, 1, s33")
    a(f"s_mul_i32 s35, s25, {2*KRP}")
    a(f"s_add_u32 s35, s35, {WS_KR}")
    a("v_lshl_add_u32 v16, v16, 4, s35")
    a("v_mov_b32 v21, s33")
    a("ds_write_b16 v21, v12 offset:514")
    for r in range(12):
        a(f"v_mov_b32 v{40+r}, 0")
    a("s_waitcnt vmcnt(6)")
    a("v_lshlrev_b32 v10, 16, v10")
    a("v_mul_f32 v11, s44, v10")
    a("v_fma_f32 v12, v10, s44, -v11")
    a("v_fma_f32 v12, v10, s45, v12")
    a("v_exp_f32 v11, v11")
    a("v_mul_f32 v12, s46, v12")
    a("v_fma_f32 v11, v11, v12, v11")
    a("v_cvt_pk_bf16_f32 v11, v11, v11")
    a("v_lshlrev_b32 v11, 16, v11")
    a("s_waitcnt vmcnt(0)")
    P.stamp()
    for r in range(4, 10):
        a(f"v_lshlrev_b32 v{r}, 16, v{r}")
    a("v_mul_f32 v4, v11, v4")
    a("v_mul_f32 v5, v11, v5")
    a("v_mul_f32 v6, v11, v6")
    a("v_mul_f32 v7, v11, v7")
    a("v_mul_f32 v32, s44, v4")
    a("v_mul_f32 v33, s47, v5")
    a("v_mul_f32 v34, v9, v7")
    a("v_fma_f32 v34, v8, v6, -v34")
    a("v_mul_f32 v35, v9, v6")
    a("v_fma_f32 v35, v8, v7, v35")
    a("v_max_f32 v6, abs(v34), abs(v35)")
    for pat in ("quad_perm:[1,0,3,2]", "quad_perm:[2,3,0,1]", "row_half_mirror", "row_mirror"):
        a(f"v_max_f32_dpp v6, v6, v6 {pat} row_mask:0xf bank_mask:0xf")
    a("v_mov_b32 v7, v6")
    a("v_permlane16_swap_b32 v6, v7")
    a("v_max_f32 v6, v6, v7")
    a("v_and_b32 v6, 0x7f800000, v6")
    a("v_max_u32 v6, 0x00800000, v6")
    a("v_min_u32 v38, 0x7e800000, v6")
    a("v_sub_u32 v7, 0x7f000000, v38")
    a("v_mul_f32 v34, v34, v7")
    a("v_mul_f32 v35, v35, v7")
    a("v_mul_f32 v4, s48, v32")
    a("v_mul_f32 v5, s48, v33")
    a("v_exp_f32 v4, v4")
    a("v_fract_f32 v5, v5")
    a("v_cos_f32 v36, v5")
    a("v_sin_f32 v37, v5")
    a("v_mul_f32 v36, v4, v36")
    a("v_mul_f32 v37, v4, v37")
    a("ds_write_b128 v14, v[32:35]")
    a("ds_write_b64 v14, v[36:37] offset:16")
    a("s_waitcnt lgkmcnt(0)")
    NG = 8
    for t in range(NG):
        off = (16 * (t // 4) + (t % 4)) * 32
        a(f"ds_read_b128 v[{64+6*t}:{67+6*t}], v13 offset:{off}")
        a(f"ds_read_b64 v[{68+6*t}:{69+6*t}], v13 offset:{off+16}")
    TT = [6, 7, 8, 9, 10, 11, 12, 17, 18, 19, 21, 22, 23, 27, 29, 31]
    PK = [(52, 56, 60, 2), (104, 108, 32, 36)]
    PK = [(52, 56, 60, 2), (64, 68, 72, 76)]
    for t in range(NG):
        pa, pb, pr, pi, er, ei = [64 + 6 * t + k for k in range(6)]
        T = [TT[0:4], TT[4:8], TT[8:12]]; X = TT[12:14]; Y = TT[14:16]
        kx, ky, ka, kc = [r + (t % 4) for r in PK[t // 4]]
        a(f"s_waitcnt lgkmcnt({2*(NG - 1 - t)})")
        for e, fr in enumerate((24, 25, 26)):
            a(f"v_mul_f32 v{T[e][0]}, v{pa}, v{fr}")
            a(f"v_mul_f32 v{T[e][1]}, v{pb}, v{fr}")
        for e in range(3):
            a(f"v_exp_f32 v{T[e][0]}, v{T[e][0]}")
            a(f"v_fract_f32 v{T[e][1]}, v{T[e][1]}")
        for e in range(3):
            a(f"v_cos_f32 v{T[e][2]}, v{T[e][1]}")
            a(f"v_sin_f32 v{T[e][3]}, v{T[e][1]}")
        a(f"v_mul_f32 v{X[0]}, v{pi}, v{T[0][3]}")
        a(f"v_mul_f32 v{X[1]}, v{pi}, v{T[0][2]}")
        a(f"v_fma_f32 v{X[0]}, v{pr}, v{T[0][2]}, -v{X[0]}")
        a(f"v_fma_f32 v{X[1]}, v{pr}, v{T[0][3]}, v{X[1]}")
        a(f"v_mul_f32 v{X[0]}, v{T[0][0]}, v{X[0]}")
        a(f"v_mul_f32 v{X[1]}, -v{T[0][0]}, v{X[1]}")
        for e in range(1, 3):
            a(f"v_mul_f32 v{T[e][2]}, v{T[e][0]}, v{T[e][2]}")
            a(f"v_mul_f32 v{T[e][3]}, v{T[e][0]}, v{T[e][3]}")
        a(f"v_mul_f32 v{Y[0]}, v{X[0]}, v{er}")
        a(f"v_mul_f32 v{Y[1]}, v{X[1]}, v{er}")
        a(f"v_fma_f32 v{Y[0]}, v{X[1]}, v{ei}, v{Y[0]}")
        a(f"v_fma_f32 v{Y[1]}, -v{X[0]}, v{ei}, v{Y[1]}")
        a(f"v_cvt_pk_f16_f32 v{kx}, v{X[0]}, v{X[1]}")
        a(f"v_cvt_pk_f16_f32 v{ka}, v{T[1][2]}, v{T[1][3]}")
        a(f"v_cvt_pk_f16_f32 v{kc}, v{T[2][2]}, v{T[2][3]}")
        a(f"v_cvt_pk_f16_f32 v{ky}, v{Y[0]}, v{Y[1]}")
        if t % 4 == 3:
            x, y, aa, cc = PK[t // 4]
            a(f"v_mfma_f32_16x16x32_f16 v[40:43], v[{x}:{x+3}], v[{aa}:{aa+3}], v[40:43]")
            a(f"v_mfma_f32_16x16x32_f16 v[44:47], v[{y}:{y+3}], v[{aa}:{aa+3}], v[44:47]")
            a(f"v_mfma_f32_16x16x32_f16 v[48:51], v[{x}:{x+3}], v[{cc}:{cc+3}], v[48:51]")
    P.stamp()
    a(f"s_add_u32 s31, s26, {XO}")
    a("s_mul_i32 s36, s24, 3072")
    a("s_add_u32 s36, s36, s31")
    a("v_lshl_add_u32 v14, v1, 4, s36")
    a("s_lshl_b32 s36, s24, 10")
    a("s_add_u32 s36, s36, s31")
    a("v_lshl_add_u32 v13, v1, 4, s36")
    a("v_lshlrev_b32 v17, 5, v15")
    a("s_lshl_b32 s36, s24, 7")
    a("v_add_u32 v18, s36, v28")
    a("s_cmp_eq_u32 s24, 2")
    a("s_cselect_b64 vcc, -1, 0")
    a("v_cndmask_b32 v18, v18, v30, vcc")
    a("v_add_u32 v18, v17, v18")
    a("v_lshl_add_u32 v18, v18, 1, s33")
    for r in range(12):
        a(f"v_mul_f32 v{40+r}, v{40+r}, v38")
    for tl in range(3):
        a(f"ds_write_b128 v14, v[{40+4*tl}:{43+4*tl}] offset:{1024*tl}")
    a("s_waitcnt lgkmcnt(0)")
    a("s_barrier")
    a("s_cmp_eq_u32 s24, 3")
    a("s_cbranch_scc1 L_kg_skip")
    for q in range(4):
        a(f"ds_read_b128 v[{64+4*q}:{67+4*q}], v13 offset:{3072*q}")
    a("s_waitcnt lgkmcnt(0)")
    for r in range(4):
        a(f"v_add_f32 v{64+r}, v{64+r}, v{68+r}")
        a(f"v_add_f32 v{72+r}, v{72+r}, v{76+r}")
    for r in range(4):
        a(f"v_add_f32 v{64+r}, v{64+r}, v{72+r}")
    a("v_cvt_pk_bf16_f32 v52, v64, v65")
    a("v_cvt_pk_bf16_f32 v53, v66, v67")
    a("ds_write_b16 v18, v52")
    a("ds_write_b16_d16_hi v18, v52 offset:16")
    a("ds_write_b16 v18, v53 offset:32")
    a("ds_write_b16_d16_hi v18, v53 offset:48")
    a("s_waitcnt lgkmcnt(0)")
    a("L_kg_skip:")
    a("s_barrier")
    for j in range(9):
        a(f"ds_read_u16 v{112+j}, v{112+j}")
    a("v_mov_b32 v56, 0")
    a("v_mov_b32 v57, 0")
    a("v_mov_b32 v58, 0")
    a("v_mov_b32 v59, 0")
    a("v_mov_b32 v3, s35")
    a("s_waitcnt lgkmcnt(0)")
    for sft in range(2):
        for k in range(4):
            e = sft + 2 * k
            a(f"v_lshl_or_b32 v{48+4*sft+k}, v{113+e}, 16, v{112+e}")
    a("global_store_dwordx4 v16, v[48:51], s[20:21]")
    a(f"v_add_u32 v16, {KRP}, v16")
    a("global_store_dwordx4 v16, v[52:55], s[20:21]")
    a(f"v_add_u32 v3, 4096, v3")
    a("global_store_dwordx4 v3, v[56:59], s[20:21]")
    a(f"v_add_u32 v3, {KRP}, v3")
    a("global_store_dwordx4 v3, v[56:59], s[20:21]")
    P.stamp(); P.flush("s[20:21]")
    a("s_endpgm")

def gen_prep():
    a = Asm()
    P = Prof(a, 0)
    a("s_cmp_ge_u32 s2, 512")
    a("s_cbranch_scc1 L_prep_done")
    a("s_cmp_ge_u32 s2, 256")
    a("s_cbranch_scc1 L_ln")
    a("v_lshrrev_b32 v2, 6, v0")
    a("v_readfirstlane_b32 s22, v2")
    a("s_mov_b32 s3, s2")
    kgen_body(a)
    a("L_ln:")
    a("s_setprio 3")
    P.stamp()
    a("s_load_dwordx2 s[4:5], s[0:1], 0")
    a("s_load_dwordx2 s[18:19], s[0:1], 128")
    a("s_load_dwordx2 s[56:57], s[0:1], 80")
    a("s_sub_u32 s3, s2, 256")
    a("s_and_b32 s20, s3, 7")
    a("s_lshr_b32 s3, s3, 3")
    a("s_lshl_b32 s20, s20, 5")
    a("s_add_u32 s3, s3, s20")
    a("s_lshl_b32 s21, s3, 13")
    a("v_lshl_add_u32 v2, v0, 4, s21")
    a("v_lshrrev_b32 v3, 6, v0")
    a("v_and_b32 v1, 63, v0")
    a("s_mov_b32 s24, 0x3b000000")
    a("s_mov_b32 s25, 0x3727c5ac")
    a("s_waitcnt lgkmcnt(0)")
    a("global_load_dwordx4 v[4:7], v2, s[4:5]")
    a("v_mul_u32_u24 v3, 1088, v3")
    a("v_lshl_add_u32 v3, v1, 4, v3")
    a("v_and_b32 v8, 0x1f0, v0")
    a("v_and_b32 v9, 3, v0")
    a("v_lshl_add_u32 v8, v9, 2, v8")
    a("v_lshlrev_b32 v8, 1, v8")
    a("v_bfe_u32 v9, v0, 2, 2")
    a("v_mul_u32_u24 v9, 1088, v9")
    a("v_add_u32 v8, v8, v9")
    a("s_lshr_b32 s20, s3, 3")
    a("s_lshl_b32 s20, s20, 16")
    a("s_and_b32 s22, s3, 7")
    a("s_lshl_b32 s22, s22, 4")
    a("s_add_u32 s20, s20, s22")
    a(f"s_add_u32 s20, s20, {WS_XB}")
    a("v_lshl_add_u32 v9, v0, 7, s20")
    a("s_waitcnt vmcnt(0)")
    if "nowpf" not in EXP: w_prefetch(a, 1, 256, "s[56:57]", 100)
    P.stamp()
    unpack(a, 4, 16)
    for ps in range(2):
        a("v_add_f32 v32, v16, v17")
        a("v_add_f32 v33, v18, v19")
        a("v_add_f32 v34, v20, v21")
        a("v_add_f32 v35, v22, v23")
        a("v_add_f32 v32, v32, v33")
        a("v_add_f32 v34, v34, v35")
        a("v_add_f32 v32, v32, v34")
        wave_allsum(a, [32], [34])
        a("v_mul_f32 v32, s24, v32")
        for i in range(8):
            a(f"v_sub_f32 v{40+i}, v{16+i}, v32")
        a("v_mul_f32 v36, v40, v40")
        a("v_mul_f32 v37, v41, v41")
        for i in range(2, 8, 2):
            a(f"v_fma_f32 v36, v{40+i}, v{40+i}, v36")
            a(f"v_fma_f32 v37, v{41+i}, v{41+i}, v37")
        a("v_add_f32 v36, v36, v37")
        wave_allsum(a, [36], [34])
        a("v_mul_f32 v36, s24, v36")
        a("v_cvt_pk_bf16_f32 v32, v32, v36")
        a("v_and_b32 v36, 0xffff0000, v32")
        a("v_lshlrev_b32 v32, 16, v32")
        a("v_add_f32 v36, s25, v36")
        a("v_cvt_pk_bf16_f32 v36, v36, v36")
        a("v_lshlrev_b32 v36, 16, v36")
        a("v_sqrt_f32 v36, v36")
        a("v_cvt_pk_bf16_f32 v36, v36, v36")
        a("v_lshlrev_b32 v36, 16, v36")
        a("v_rcp_f32 v36, v36")
        for i in range(8):
            a(f"v_sub_f32 v{40+i}, v{16+i}, v32")
        for i in range(4):
            a(f"v_cvt_pk_bf16_f32 v{48+i}, v{40+2*i}, v{41+2*i}")
        unpack(a, 48, 40)
        for i in range(8):
            a(f"v_mul_f32 v{40+i}, v{40+i}, v36")
        for i in range(4):
            a(f"v_cvt_pk_bf16_f32 v{48+i}, v{40+2*i}, v{41+2*i}")
        if ps == 0:
            unpack(a, 48, 16)
        a(f"ds_write_b128 v3, v[48:51] offset:{8704*ps}")
    a("s_waitcnt lgkmcnt(0)")
    a("s_barrier")
    for arr in range(2):
        d = 52 + 4 * arr
        a(f"ds_read_b64_tr_b16 v[{d}:{d+1}], v8 offset:{8704*arr}")
        a(f"ds_read_b64_tr_b16 v[{d+2}:{d+3}], v8 offset:{8704*arr+4352}")
    a("s_waitcnt lgkmcnt(0)")
    a("global_store_dwordx4 v9, v[52:55], s[18:19]")
    a("global_store_dwordx4 v2, v[56:59], s[18:19]")
    P.stamp()
    P.flush()
    a("L_prep_done:")
    a("s_endpgm")
    return head("prep_kernel") + a.text() + kd("prep_kernel", 128)

def gemm_body(a, which, S, PF=True):
    pitch = 3584 if which == 1 else 4096
    KK = 2048 if which == 1 else 1792
    NIT = KK // 64
    act_off = WS_HB if which == 1 else WS_G
    L = f"g{which}"
    P = Prof(a, which)
    P.stamp()
    if "prio" in EXP: a("s_setprio 3")
    a(f"s_load_dwordx4 s[12:15], s[0:1], {80 if which == 1 else 96}")
    a("s_load_dwordx2 s[18:19], s[0:1], 128")
    if which == 2:
        a("s_load_dwordx2 s[16:17], s[0:1], 0")
        a("s_load_dwordx2 s[20:21], s[0:1], 112")
    a("v_and_b32 v1, 63, v0")
    a("s_and_b32 s23, s22, 1")
    a("s_bfe_u32 s24, s22, 0x10001")
    a("s_lshr_b32 s28, s22, 2")
    a("v_lshrrev_b32 v2, 3, v1")
    a("s_lshl_b32 s25, s22, 3")
    a("v_add_u32 v2, s25, v2")
    a(f"v_mul_u32_u24 v2, {pitch}, v2")
    a("v_and_b32 v3, 7, v1")
    a("v_bfe_u32 v4, v1, 4, 1")
    a("v_lshlrev_b32 v4, 2, v4")
    a("v_xor_b32 v3, v3, v4")
    a("v_lshl_add_u32 v2, v3, 4, v2")
    a("s_lshl_b32 s25, s30, 7")
    a("v_add_u32 v10, s25, v2")
    a("s_lshl_b32 s25, s22, 13")
    a("s_lshl_b32 s26, s31, 10")
    a("s_add_u32 s25, s25, s26")
    a("v_lshl_add_u32 v12, v1, 4, s25")
    a("s_lshl_b32 s27, s22, 10")
    a("s_mov_b32 s32, 0")
    a("s_mov_b32 s33, 0")
    a("s_mov_b32 s7, 0x00020000")
    a("s_mov_b32 s11, 0x00020000")
    a(f"s_mov_b32 s6, {KK*pitch}")
    a(f"s_mov_b32 s10, {KK//8*8192}")
    a("s_waitcnt lgkmcnt(0)")
    a("s_mov_b32 s4, s12")
    a("s_mov_b32 s5, s13")
    a(f"s_add_u32 s8, s18, {act_off}")
    a("s_addc_u32 s9, s19, 0")
    def dma():
        a("s_mov_b32 m0, s34")
        a("buffer_load_dwordx4 v10, s[4:7], s32 offen lds")
        a("s_add_u32 m0, s34, 8192")
        a("buffer_load_dwordx4 v12, s[8:11], s33 offen lds")
        a(f"s_add_u32 s32, s32, {64*pitch}")
        a("s_add_u32 s33, s33, 65536")
    for st in range(S):
        a(f"s_add_u32 s34, s27, {st*16384}")
        dma()
    a("v_lshrrev_b32 v2, 5, v1")
    a("v_lshlrev_b32 v2, 3, v2")
    a("v_bfe_u32 v3, v1, 2, 2")
    a("v_add_u32 v2, v2, v3")
    a("v_lshlrev_b32 v2, 7, v2")
    a("v_bfe_u32 v4, v1, 4, 1")
    a("v_lshlrev_b32 v4, 1, v4")
    a("v_bfe_u32 v5, v1, 1, 1")
    a("v_add_u32 v4, v4, v5")
    a("s_lshl_b32 s25, s23, 2")
    a("v_add_u32 v4, s25, v4")
    a("v_bfe_u32 v5, v1, 3, 1")
    a("v_lshlrev_b32 v5, 2, v5")
    a("v_xor_b32 v4, v4, v5")
    a("v_lshl_add_u32 v2, v4, 4, v2")
    a("v_and_b32 v5, 1, v1")
    a("v_lshl_add_u32 v2, v5, 3, v2")
    a("s_lshl_b32 s25, s28, 12")
    a("v_add_u32 v14, s25, v2")
    a("v_lshrrev_b32 v2, 5, v1")
    a("v_lshlrev_b32 v2, 10, v2")
    a("v_and_b32 v3, 31, v1")
    a("v_lshl_add_u32 v2, v3, 4, v2")
    a("s_lshl_b32 s26, s24, 9")
    a("s_add_u32 s25, s25, s26")
    a("s_add_u32 s25, s25, 8192")
    a("v_add_u32 v15, s25, v2")
    a("v_lshrrev_b32 v2, 5, v1")
    a("s_lshl_b32 s25, s30, 7")
    a("s_lshl_b32 s26, s23, 6")
    a("s_add_u32 s25, s25, s26")
    a("s_lshl_b32 s26, s28, 5")
    a("s_add_u32 s25, s25, s26")
    a("v_lshl_add_u32 v6, v2, 3, s25")
    a("global_load_dwordx2 v[64:65], v6, s[14:15]")
    a("global_load_dwordx2 v[66:67], v6, s[14:15] offset:16")
    nextra = 2
    a("v_and_b32 v3, 31, v1")
    a("s_lshl_b32 s25, s31, 6")
    a("s_lshl_b32 s26, s24, 5")
    a("s_add_u32 s25, s25, s26")
    a("v_add_u32 v13, s25, v3")
    if which == 2:
        a("v_lshlrev_b32 v3, 7, v13")
        a("v_lshl_add_u32 v3, v2, 3, v3")
        a("s_lshl_b32 s25, s30, 16")
        a("s_lshl_b32 s26, s23, 6")
        a("s_add_u32 s25, s25, s26")
        a("s_lshl_b32 s26, s28, 5")
        a("s_add_u32 s25, s25, s26")
        a(f"s_add_u32 s25, s25, {WS_S}")
        a("v_add_u32 v3, s25, v3")
        a("global_load_dwordx2 v[68:69], v3, s[18:19]")
        a("global_load_dwordx2 v[70:71], v3, s[18:19] offset:16")
        a("v_and_b32 v3, 15, v1")
        a("s_lshl_b32 s25, s30, 6")
        a("s_and_b32 s26, s22, 3")
        a("s_lshl_b32 s26, s26, 4")
        a("s_add_u32 s25, s25, s26")
        a("v_add_u32 v3, s25, v3")
        a("v_lshlrev_b32 v3, 10, v3")
        a("v_lshrrev_b32 v2, 4, v1")
        a("v_lshl_add_u32 v3, v2, 4, v3")
        a("s_lshl_b32 s25, s31, 7")
        a("s_lshl_b32 s26, s28, 6")
        a("s_add_u32 s25, s25, s26")
        a("v_add_u32 v7, s25, v3")
        a("global_load_dwordx4 v[72:75], v7, s[16:17]")
        nextra = 5
    for r in range(16):
        a(f"v_mov_b32 v{16+r}, 0")
    SETS = [(32, 40), (48, 56)]
    def reads(st, j):
        A, B = SETS[st]
        if j == 0:
            a("v_add_u32 v8, s35, v14")
            a("v_add_u32 v9, s35, v15")
        a(f"ds_read_b64_tr_b16 v[{A+4*j}:{A+4*j+1}], v8 offset:{2048*j}")
        a(f"ds_read_b64_tr_b16 v[{A+4*j+2}:{A+4*j+3}], v8 offset:{2048*j+512}")
        a(f"ds_read_b128 v[{B+4*j}:{B+4*j+3}], v9 offset:{2048*j}")
    def adv():
        a("s_add_u32 s34, s35, s27")
        a("s_add_u32 s35, s35, 16384")
        a(f"s_cmp_eq_u32 s35, {S*16384}")
        a("s_cselect_b32 s35, 0, s35")
    a("s_mov_b32 s35, 0")
    a("s_mov_b32 s37, 0")
    P.stamp()
    a(f"s_waitcnt vmcnt({2*(S-1)+nextra})")
    a("s_barrier")
    P.stamp()
    reads(0, 0); reads(0, 1)
    D = S - 2
    def iteration(par, do_dma, vm, do_reads=True):
        adv()
        a(f"s_waitcnt vmcnt({vm}) lgkmcnt(0)")
        a("s_barrier")
        A, B = SETS[par]
        for j in range(2):
            a(f"v_mfma_f32_32x32x16_bf16 v[16:31], v[{A+4*j}:{A+4*j+3}], v[{B+4*j}:{B+4*j+3}], v[16:31]")
            if do_reads: reads(1 - par, j)
            if do_dma:
                if j == 0:
                    a("s_mov_b32 m0, s34")
                    a("buffer_load_dwordx4 v10, s[4:7], s32 offen lds")
                    a(f"s_add_u32 s32, s32, {64*pitch}")
                else:
                    a("s_add_u32 m0, s34, 8192")
                    a("buffer_load_dwordx4 v12, s[8:11], s33 offen lds")
                    a("s_add_u32 s33, s33, 65536")
    R = NIT - S
    it = 0
    npeel = S - 1
    npeel += npeel % 2
    while it < npeel:
        iteration(it & 1, True, 2 * D + (nextra if it + 1 <= S - 1 else 0)); it += 1
    nloop = (R - it) // 2
    a.loop_begin(f"L_{L}_loop")
    iteration(0, True, 2 * D)
    iteration(1, True, 2 * D)
    a("s_add_u32 s37, s37, 1")
    a(f"s_cmp_lt_u32 s37, {nloop}")
    a(f"s_cbranch_scc1 L_{L}_loop")
    a.loop_end()
    it += 2 * nloop
    while it < NIT:
        dm = it < R
        last = min(it + S - 1, NIT - 1)
        vm = 2 * max(0, last - (it + 1))
        iteration(it & 1, dm, vm, do_reads=(it + 1 < NIT)); it += 1
    P.stamp()
    if "iters" in EXP:
        a("s_lshl_b32 s62, s2, 3")
        a("s_add_u32 s62, s62, s22")
        a("s_lshl_b32 s62, s62, 8")
        a(f"s_add_u32 s62, s62, {(24<<20) + (which << 20)}")
        a("v_lshl_add_u32 v121, v1, 2, s62")
        a("global_store_dword v121, v120, s[18:19]")
    if which == 1 and "wpf" in EXP:
        a("s_load_dwordx2 s[40:41], s[0:1], 96")
        a("s_lshr_b32 s45, s2, 3")
        a("s_lshl_b32 s45, s45, 9")
        a("v_add_u32 v120, s45, v0")
        a("v_lshrrev_b32 v121, 3, v120")
        a("v_and_b32 v122, 7, v120")
        a("v_lshlrev_b32 v121, 12, v121")
        a("v_lshl_add_u32 v121, v122, 7, v121")
        a("s_lshr_b32 s44, s3, 1")
        a("s_lshl_b32 s44, s44, 10")
        a("v_add_u32 v121, s44, v121")
        a("s_waitcnt lgkmcnt(0)")
        a("global_load_dword v127, v121, s[40:41]")
    a("s_lshl_b32 s25, s22, 11")
    a("v_lshl_add_u32 v2, v1, 4, s25")
    a("s_xor_b32 s25, s25, 8192")
    a("v_lshl_add_u32 v3, v1, 4, s25")
    a("s_barrier")
    a("s_cmp_eq_u32 s28, 1")
    a(f"s_cbranch_scc1 L_{L}_kh1")
    a("ds_write_b128 v2, v[24:27]")
    a("ds_write_b128 v2, v[28:31] offset:1024")
    a(f"s_branch L_{L}_khj")
    a(f"L_{L}_kh1:")
    a("s_nop 7")
    a("s_nop 3")
    a("ds_write_b128 v2, v[16:19]")
    a("ds_write_b128 v2, v[20:23] offset:1024")
    for r in range(8):
        a(f"v_mov_b32 v{16+r}, v{24+r}")
    a(f"L_{L}_khj:")
    unpack(a, 64, 32)
    a("s_waitcnt lgkmcnt(0)")
    a("s_barrier")
    a("ds_read_b128 v[40:43], v3")
    a("ds_read_b128 v[44:47], v3 offset:1024")
    a("s_waitcnt lgkmcnt(0)")
    for i in range(8):
        a(f"v_add_f32 v{16+i}, v{16+i}, v{40+i}")
    for i in range(0, 8, 2):
        a(f"v_cvt_pk_bf16_f32 v48, v{16+i}, v{17+i}")
        a(f"v_lshlrev_b32 v{16+i}, 16, v48")
        a(f"v_and_b32 v{17+i}, 0xffff0000, v48")
        a(f"v_add_f32 v{16+i}, v{16+i}, v{32+i}")
        a(f"v_add_f32 v{17+i}, v{17+i}, v{33+i}")
        a(f"v_cvt_pk_bf16_f32 v48, v{16+i}, v{17+i}")
        a(f"v_lshlrev_b32 v{16+i}, 16, v48")
        a(f"v_and_b32 v{17+i}, 0xffff0000, v48")
    if which == 1:
        a("s_mov_b32 s25, 0x3d372713")
        a("s_mov_b32 s26, 0xc0135761")
        for i in range(8):
            a(f"v_mul_f32 v{32+i}, v{16+i}, v{16+i}")
            a(f"v_fma_f32 v{32+i}, v{32+i}, s25, 1.0")
            a(f"v_mul_f32 v{32+i}, v{16+i}, v{32+i}")
            a(f"v_mul_f32 v{32+i}, s26, v{32+i}")
    else:
        a("s_mov_b32 s26, 0xbfb8aa3b")
        for i in range(8):
            a(f"v_mul_f32 v{32+i}, s26, v{16+i}")
    for i in range(8):
        a(f"v_exp_f32 v{32+i}, v{32+i}")
    for i in range(8):
        a(f"v_add_f32 v{32+i}, 1.0, v{32+i}")
    for i in range(8):
        a(f"v_rcp_f32 v{32+i}, v{32+i}")
    for i in range(8):
        a(f"v_mul_f32 v{16+i}, v{16+i}, v{32+i}")
    if which == 1:
        for i in range(0, 8, 2):
            a(f"v_cvt_pk_bf16_f32 v{48+i//2}, v{16+i}, v{17+i}")
        a("v_lshlrev_b32 v3, 4, v13")
        a("v_lshrrev_b32 v2, 5, v1")
        a("v_lshl_add_u32 v3, v2, 3, v3")
        a("s_lshl_b32 s25, s30, 16")
        a("s_lshl_b32 s26, s23, 15")
        a("s_add_u32 s25, s25, s26")
        a("s_lshl_b32 s26, s28, 14")
        a("s_add_u32 s25, s25, s26")
        a(f"s_add_u32 s25, s25, {WS_G}")
        a("v_add_u32 v3, s25, v3")
        a("v_add_u32 v4, 8192, v3")
        a("global_store_dwordx2 v3, v[48:49], s[18:19]")
        a("global_store_dwordx2 v4, v[50:51], s[18:19]")
        P.stamp(); P.flush()
        a("s_endpgm")
    else:
        for i in range(0, 8, 2):
            a(f"v_cvt_pk_bf16_f32 v48, v{16+i}, v{17+i}")
            a(f"v_lshlrev_b32 v{16+i}, 16, v48")
            a(f"v_and_b32 v{17+i}, 0xffff0000, v48")
            a(f"v_lshlrev_b32 v49, 16, v{68+i//2}")
            a(f"v_and_b32 v50, 0xffff0000, v{68+i//2}")
            a(f"v_mul_f32 v{16+i}, v{16+i}, v49")
            a(f"v_mul_f32 v{17+i}, v{17+i}, v50")
            a(f"v_cvt_pk_bf16_f32 v{32+i//2}, v{16+i}, v{17+i}")
        a("v_and_b32 v3, 31, v1")
        a("s_lshl_b32 s25, s24, 5")
        a("v_add_u32 v3, s25, v3")
        a("v_mul_u32_u24 v3, 144, v3")
        a("v_lshrrev_b32 v2, 5, v1")
        a("v_lshl_add_u32 v3, v2, 3, v3")
        a("s_lshl_b32 s25, s23, 6")
        a("s_lshl_b32 s26, s28, 5")
        a("s_add_u32 s25, s25, s26")
        a("s_add_u32 s25, s25, 16384")
        a("v_add_u32 v3, s25, v3")
        a("ds_write_b64 v3, v[32:33]")
        a("ds_write_b64 v3, v[34:35] offset:16")
        a("v_lshrrev_b32 v2, 4, v1")
        a("v_lshlrev_b32 v2, 3, v2")
        a("v_bfe_u32 v4, v1, 2, 2")
        a("v_add_u32 v2, v2, v4")
        a("v_mul_u32_u24 v2, 144, v2")
        a("v_and_b32 v4, 3, v1")
        a("v_lshl_add_u32 v2, v4, 3, v2")
        a("s_and_b32 s25, s22, 3")
        a("s_lshl_b32 s25, s25, 5")
        a(f"s_mul_i32 s26, s28, {32*144}")
        a("s_add_u32 s25, s25, s26")
        a("s_add_u32 s25, s25, 16384")
        a("v_add_u32 v2, s25, v2")
        a("s_waitcnt lgkmcnt(0)")
        a("s_barrier")
        a("ds_read_b64_tr_b16 v[40:41], v2")
        a(f"ds_read_b64_tr_b16 v[42:43], v2 offset:{4*144}")
        a("s_waitcnt lgkmcnt(0)")
        for i in range(4):
            a(f"v_lshlrev_b32 v48, 16, v{40+i}")
            a(f"v_and_b32 v49, 0xffff0000, v{40+i}")
            a(f"v_lshlrev_b32 v50, 16, v{72+i}")
            a(f"v_and_b32 v51, 0xffff0000, v{72+i}")
            a(f"v_add_f32 v48, v48, v50")
            a(f"v_add_f32 v49, v49, v51")
            a(f"v_cvt_pk_bf16_f32 v{56+i}, v48, v49")
        a("global_store_dwordx4 v7, v[56:59], s[20:21]")
        P.stamp(); P.flush()
        a("s_endpgm")


def conv_gen(a, cb):
    CH = 24576; RB = 4608; RP = 4416
    V = lambda n: 128 + n
    a("s_lshr_b32 s43, s22, 2")
    a("s_and_b32 s44, s22, 3")
    a("s_lshl_b32 s45, s2, 1")
    a("s_add_u32 s45, s45, s43")
    a(f"s_mul_i32 s46, s43, {CH}")
    a(f"s_add_u32 s46, s46, {cb}")
    a("s_lshl_b32 s47, s45, 1")
    a(f"v_mov_b32 v{V(3)}, s47")
    a("s_lshl_b32 s47, s44, 19")
    a("s_lshl_b32 s48, s45, 7")
    a("s_add_u32 s47, s47, s48")
    a(f"v_lshrrev_b32 v{V(12)}, 3, v1")
    a(f"v_lshlrev_b32 v{V(12)}, 16, v{V(12)}")
    a(f"v_and_b32 v{V(13)}, 7, v1")
    a(f"v_lshl_add_u32 v{V(12)}, v{V(13)}, 4, v{V(12)}")
    a(f"v_add_u32 v{V(12)}, s47, v{V(12)}")
    a(f"s_mul_i32 s47, s45, {2*KRP}")
    a("s_and_b32 s48, s44, 1")
    a(f"s_mul_i32 s48, s48, {KRP}")
    a("s_add_u32 s47, s47, s48")
    a("s_lshr_b32 s48, s44, 1")
    a("s_lshl_b32 s48, s48, 2")
    a("s_add_u32 s47, s47, s48")
    a(f"s_add_u32 s47, s47, {WS_KR - WS_XB}")
    a(f"v_lshl_add_u32 v{V(13)}, v1, 4, s47")
    a("s_lshl_b32 s48, s44, 10")
    a("s_add_u32 s48, s48, s46")
    a(f"s_mul_i32 s49, s44, {RP}")
    a("s_add_u32 s49, s49, s46")
    a(f"s_add_u32 s49, s49, {RB}")
    a(f"s_add_u32 s52, s18, {WS_XB}")
    a("s_addc_u32 s53, s19, 0")
    a(f"s_mov_b32 s54, {(WS_G - WS_XB)}")
    a("s_mov_b32 s55, 0x00020000")
    a("s_add_u32 m0, s48, 512")
    a.vm(f"buffer_load_dwordx4 v{V(12)}, s[52:55], 0 offen lds")
    a("s_mov_b32 m0, s49")
    for i in range(4):
        a.vm(f"buffer_load_dwordx4 v{V(13)}, s[52:55], 0 offen offset:{1024*i} lds")
    lastvm = a.vm(f"global_load_ushort v{V(7)}, v{V(3)}, s[16:17]")
    yield "pro"
    a(f"v_mov_b32 v{V(12)}, 0")
    a(f"v_mov_b32 v{V(13)}, 0")
    a(f"v_lshl_add_u32 v{V(14)}, v1, 3, s46")
    a.ds(f"ds_write_b64 v{V(14)}, v[{V(12)}:{V(13)}]")
    a("s_add_u32 s47, s49, 4096")
    a(f"v_lshl_add_u32 v{V(3)}, v1, 2, s47")
    zid = a.ds(f"ds_write_b32 v{V(3)}, v{V(12)}")
    a(f"v_and_b32 v{V(0)}, 15, v1")
    a(f"v_lshrrev_b32 v{V(15)}, 4, v1")
    a(f"v_lshrrev_b32 v{V(11)}, 5, v1")
    a(f"v_bfe_u32 v{V(12)}, v1, 4, 1")
    a(f"v_sub_u32 v{V(13)}, v{V(0)}, v{V(11)}")
    a(f"v_lshlrev_b32 v{V(13)}, 5, v{V(13)}")
    a(f"v_lshl_add_u32 v{V(13)}, v{V(12)}, 4, v{V(13)}")
    a("s_lshl_b32 s47, s44, 6")
    a("s_sub_u32 s47, s46, s47")
    a("s_add_u32 s50, s47, 256")
    a(f"v_add_u32 v{V(13)}, s50, v{V(13)}")
    a(f"v_lshlrev_b32 v{V(14)}, 4, v{V(12)}")
    a(f"v_lshlrev_b32 v{V(10)}, 5, v{V(11)}")
    a(f"v_sub_u32 v{V(14)}, v{V(14)}, v{V(10)}")
    a(f"v_lshlrev_b32 v{V(10)}, 1, v{V(0)}")
    a(f"v_sub_u32 v{V(14)}, v{V(14)}, v{V(10)}")
    a(f"v_sub_u32 v{V(10)}, 3, v{V(0)}")
    a(f"v_and_b32 v{V(10)}, 3, v{V(10)}")
    a(f"v_mov_b32 v{V(11)}, {RP-2}")
    a(f"v_mad_u32_u24 v{V(14)}, v{V(10)}, v{V(11)}, v{V(14)}")
    a(f"s_add_u32 s50, s47, {RB+254}")
    a(f"v_add_u32 v{V(14)}, s50, v{V(14)}")
    a(f"v_lshlrev_b32 v{V(4)}, 5, v{V(0)}")
    a(f"v_lshl_add_u32 v{V(4)}, v{V(15)}, 3, v{V(4)}")
    a(f"v_add_u32 v{V(4)}, s48, v{V(4)}")
    a(f"v_lshrrev_b32 v{V(5)}, 2, v{V(0)}")
    a(f"v_lshlrev_b32 v{V(5)}, 16, v{V(5)}")
    a(f"v_and_b32 v{V(6)}, 3, v{V(0)}")
    a(f"v_lshl_add_u32 v{V(5)}, v{V(6)}, 5, v{V(5)}")
    a(f"v_lshl_add_u32 v{V(5)}, v{V(15)}, 3, v{V(5)}")
    a("s_lshl_b32 s47, s44, 19")
    a("s_lshl_b32 s50, s45, 7")
    a("s_add_u32 s47, s47, s50")
    a(f"s_add_u32 s47, s47, {WS_S}")
    a(f"v_add_u32 v{V(5)}, s47, v{V(5)}")
    a(f"v_lshl_add_u32 v{V(2)}, v1, 4, s46")
    a("s_mul_i32 s47, s44, 6144")
    a(f"v_add_u32 v{V(3)}, s47, v{V(2)}")
    for r in range(32):
        a(f"v_mov_b32 v{V(16+r)}, 0")
    a.wait(vm=lastvm, ds=zid)
    yield "bar"
    NT = 4; TB = V(48); UB = V(64)
    tid = {}
    def tread(c):
        tb = TB + 4 * (c % NT)
        a.ds(f"ds_read_b64 v[{tb}:{tb+1}], v{V(14)} offset:{256*(15-c)}")
        tid[c] = a.ds(f"ds_read_b64 v[{tb+2}:{tb+3}], v{V(14)} offset:{256*(15-c)+8}")
    uid = {}
    tread(0)
    for idx in (1, 3, 5, 7, 9, 11, 13, 15):
        uid[idx] = a.ds(f"ds_read_b128 v[{UB+4*idx}:{UB+4*idx+3}], v{V(13)} offset:{256*idx}")
    tread(1)
    yield "x"
    for idx in (0, 2, 4, 6, 8, 10, 12, 14):
        uid[idx] = a.ds(f"ds_read_b128 v[{UB+4*idx}:{UB+4*idx+3}], v{V(13)} offset:{256*idx}")
    tread(2); tread(3)
    a.ds(f"ds_read_b64 v[{V(8)}:{V(9)}], v{V(4)} offset:512")
    xid = a.ds(f"ds_read_b64 v[{V(10)}:{V(11)}], v{V(4)} offset:1024")
    a(f"v_lshlrev_b32 v{V(7)}, 16, v{V(7)}")
    seq = [(c, A) for c in range(16) for A in range(8) if 2 * A - c + 1 >= 0]
    waited = 0
    for k, (c, A) in enumerate(seq):
        idx = 2 * A - c + 1
        need_ = max(tid[c], uid[idx])
        if need_ > waited:
            a.wait(ds=need_); waited = need_
        tb = TB + 4 * (c % NT)
        acc = V(16 + 4 * A)
        a(f"v_mfma_f32_16x16x32_bf16 v[{acc}:{acc+3}], v[{tb}:{tb+3}], v[{UB+4*idx}:{UB+4*idx+3}], v[{acc}:{acc+3}]")
        if A == 7 and c + NT < 16:
            tread(c + NT)
        if k % 3 == 2 and k + 1 < len(seq): yield "x"
    a.wait(ds=xid)
    yield "bar"
    base_n = a.nds
    for rho in range(4):
        if rho < 3:
            a(f"s_cmp_eq_u32 s44, {rho}")
            a(f"s_cbranch_scc0 {a.uniq}_n{rho}")
        a("s_nop 7")
        for sg in range(4):
            if sg == rho: continue
            k = (rho - sg - 1) & 3
            for t in range(2):
                r = V(16 + 8 * sg + 4 * t)
                a(f"ds_write_b128 v{V(2)}, v[{r}:{r+3}] offset:{(sg*3+k)*2048 + 1024*t}")
        for r in range(8):
            a(f"v_mov_b32 v{V(48+r)}, v{V(16+8*rho+r)}")
        if rho < 3:
            a(f"s_branch {a.uniq}_join")
            a(f"{a.uniq}_n{rho}:")
    a(f"{a.uniq}_join:")
    a.nds = base_n + 6
    a.wait(ds=a.nds)
    yield "bar"
    for k in range(3):
        for t in range(2):
            eid = a.ds(f"ds_read_b128 v[{V(64+8*k+4*t)}:{V(67+8*k+4*t)}], v{V(3)} offset:{2048*k+1024*t}")
    yield "x"
    a.wait(ds=eid)
    for i in range(8):
        a(f"v_add_f32 v{V(48+i)}, v{V(48+i)}, v{V(64+i)}")
        a(f"v_add_f32 v{V(72+i)}, v{V(72+i)}, v{V(80+i)}")
    for i in range(8):
        a(f"v_add_f32 v{V(48+i)}, v{V(48+i)}, v{V(72+i)}")
    for h in range(4):
        if h == 2: yield "x"
        i = 2 * h
        a(f"v_cvt_pk_bf16_f32 v{V(12)}, v{V(48+i)}, v{V(49+i)}")
        a(f"v_lshlrev_b32 v{V(48+i)}, 16, v{V(12)}")
        a(f"v_and_b32 v{V(49+i)}, 0xffff0000, v{V(12)}")
        a(f"v_lshlrev_b32 v{V(12)}, 16, v{V(8+h)}")
        a(f"v_and_b32 v{V(13)}, 0xffff0000, v{V(8+h)}")
        a(f"v_mul_f32 v{V(12)}, v{V(12)}, v{V(7)}")
        a(f"v_mul_f32 v{V(13)}, v{V(13)}, v{V(7)}")
        a(f"v_cvt_pk_bf16_f32 v{V(12)}, v{V(12)}, v{V(13)}")
        a(f"v_and_b32 v{V(13)}, 0xffff0000, v{V(12)}")
        a(f"v_lshlrev_b32 v{V(12)}, 16, v{V(12)}")
        a(f"v_add_f32 v{V(12)}, v{V(12)}, v{V(48+i)}")
        a(f"v_add_f32 v{V(13)}, v{V(13)}, v{V(49+i)}")
        a(f"v_cvt_pk_bf16_f32 v{V(56+h)}, v{V(12)}, v{V(13)}")
    a.vm(f"global_store_dwordx2 v{V(5)}, v[{V(56)}:{V(57)}], s[18:19]")
    a(f"v_add_u32 v{V(5)}, {4*65536}, v{V(5)}")
    a.vm(f"global_store_dwordx2 v{V(5)}, v[{V(58)}:{V(59)}], s[18:19]")

def gemm1_conv(a, S, P):
    pitch = 3584; KK = 2048; NIT = 32
    PFIT = int(os.environ.get('PFIT', 25))
    cg = conv_gen(a, S * 16384)
    next(cg)
    a("s_and_b32 s23, s22, 1")
    a("s_bfe_u32 s24, s22, 0x10001")
    a("s_lshr_b32 s28, s22, 2")
    a("v_lshrrev_b32 v2, 3, v1")
    a("s_lshl_b32 s25, s22, 3")
    a("v_add_u32 v2, s25, v2")
    a(f"v_mul_u32_u24 v2, {pitch}, v2")
    a("v_and_b32 v3, 7, v1")
    a("v_bfe_u32 v4, v1, 4, 1")
    a("v_lshlrev_b32 v4, 2, v4")
    a("v_xor_b32 v3, v3, v4")
    a("v_lshl_add_u32 v2, v3, 4, v2")
    a("s_lshl_b32 s25, s30, 7")
    a("v_add_u32 v10, s25, v2")
    a("s_lshl_b32 s25, s22, 13")
    a("s_lshl_b32 s26, s31, 10")
    a("s_add_u32 s25, s25, s26")
    a("v_lshl_add_u32 v12, v1, 4, s25")
    a("s_lshl_b32 s27, s22, 10")
    a("s_mov_b32 s32, 0")
    a("s_mov_b32 s33, 0")
    a("s_mov_b32 s4, s12")
    a("s_mov_b32 s5, s13")
    a(f"s_mov_b32 s6, {KK*pitch}")
    a("s_mov_b32 s7, 0x00020000")
    a(f"s_add_u32 s8, s18, {WS_HB}")
    a("s_addc_u32 s9, s19, 0")
    a(f"s_mov_b32 s10, {KK//8*8192}")
    a("s_mov_b32 s11, 0x00020000")
    dm = {}
    def dma(st, part=None):
        sl = (st % S) * 16384
        if part in (None, 0):
            a(f"s_add_u32 m0, s27, {sl}")
            a.vm("buffer_load_dwordx4 v10, s[4:7], s32 offen lds")
            a(f"s_add_u32 s32, s32, {64*pitch}")
        if part in (None, 1):
            a(f"s_add_u32 m0, s27, {sl+8192}")
            dm[st] = a.vm("buffer_load_dwordx4 v12, s[8:11], s33 offen lds")
            a("s_add_u32 s33, s33, 65536")
    NPRO = S
    for st in range(NPRO):
        dma(st)
    a("v_lshrrev_b32 v2, 5, v1")
    a("v_lshlrev_b32 v2, 3, v2")
    a("v_bfe_u32 v3, v1, 2, 2")
    a("v_add_u32 v2, v2, v3")
    a("v_lshlrev_b32 v2, 7, v2")
    a("v_bfe_u32 v4, v1, 4, 1")
    a("v_lshlrev_b32 v4, 1, v4")
    a("v_bfe_u32 v5, v1, 1, 1")
    a("v_add_u32 v4, v4, v5")
    a("s_lshl_b32 s25, s23, 2")
    a("v_add_u32 v4, s25, v4")
    a("v_bfe_u32 v5, v1, 3, 1")
    a("v_lshlrev_b32 v5, 2, v5")
    a("v_xor_b32 v4, v4, v5")
    a("v_lshl_add_u32 v2, v4, 4, v2")
    a("v_and_b32 v5, 1, v1")
    a("v_lshl_add_u32 v2, v5, 3, v2")
    a("s_lshl_b32 s25, s28, 12")
    a("v_add_u32 v14, s25, v2")
    a("v_add_u32 v8, 0x10000, v14")
    a("v_lshrrev_b32 v2, 5, v1")
    a("v_lshlrev_b32 v2, 10, v2")
    a("v_and_b32 v3, 31, v1")
    a("v_lshl_add_u32 v2, v3, 4, v2")
    a("s_lshl_b32 s26, s24, 9")
    a("s_add_u32 s25, s25, s26")
    a("s_add_u32 s25, s25, 8192")
    a("v_add_u32 v15, s25, v2")
    a("v_add_u32 v9, 0x10000, v15")
    a("v_lshrrev_b32 v2, 5, v1")
    a("s_lshl_b32 s25, s30, 7")
    a("s_lshl_b32 s26, s23, 6")
    a("s_add_u32 s25, s25, s26")
    a("s_lshl_b32 s26, s28, 5")
    a("s_add_u32 s25, s25, s26")
    a("v_lshl_add_u32 v6, v2, 3, s25")
    a.vm("global_load_dwordx2 v[64:65], v6, s[14:15]")
    bias = a.vm("global_load_dwordx2 v[66:67], v6, s[14:15] offset:16")
    a("v_and_b32 v3, 31, v1")
    a("s_lshl_b32 s25, s31, 6")
    a("s_lshl_b32 s26, s24, 5")
    a("s_add_u32 s25, s25, s26")
    a("v_add_u32 v13, s25, v3")
    for r in range(16):
        a(f"v_mov_b32 v{16+r}, 0")
    SETS = [(32, 40), (48, 56)]
    rd = {}
    def reads(st, js=(0, 1)):
        A, B = SETS[st & 1]
        sl = (st % S) * 16384
        va, vb = (14, 15) if sl < 65536 else (8, 9)
        sl %= 65536
        for j in js:
            a.ds(f"ds_read_b64_tr_b16 v[{A+4*j}:{A+4*j+1}], v{va} offset:{sl+2048*j}")
            a.ds(f"ds_read_b64_tr_b16 v[{A+4*j+2}:{A+4*j+3}], v{va} offset:{sl+2048*j+512}")
            rd[st] = a.ds(f"ds_read_b128 v[{B+4*j}:{B+4*j+3}], v{vb} offset:{sl+2048*j}")
    assert next(cg) == "bar"
    P.stamp()
    a.wait(vm=dm[0])
    a("s_barrier")
    P.stamp()
    reads(0)
    done = False
    for it in range(NIT):
        a.wait(vm=dm[it + 1] if it + 1 < NIT else None, ds=rd[it])
        a("s_barrier")
        A, B = SETS[it & 1]
        for j in range(2):
            a(f"v_mfma_f32_32x32x16_bf16 v[16:31], v[{A+4*j}:{A+4*j+3}], v[{B+4*j}:{B+4*j+3}], v[16:31]")
            if it + 1 < NIT: reads(it + 1, (j,))
            if it + S < NIT: dma(it + S, j)
        if it == PFIT and "nowpf" not in EXP: w_prefetch(a, 2, 0, "s[38:39]", 70, True)
        if not done:
            try: next(cg)
            except StopIteration: done = True
    assert done
    P.stamp()
    a("s_lshl_b32 s25, s22, 11")
    a("v_lshl_add_u32 v2, v1, 4, s25")
    a("s_xor_b32 s25, s25, 8192")
    a("v_lshl_add_u32 v3, v1, 4, s25")
    a("s_barrier")
    a("s_cmp_eq_u32 s28, 1")
    a("s_cbranch_scc1 L_g1_kh1")
    a("ds_write_b128 v2, v[24:27]")
    a("ds_write_b128 v2, v[28:31] offset:1024")
    a("s_branch L_g1_khj")
    a("L_g1_kh1:")
    a("s_nop 7")
    a("s_nop 3")
    a("ds_write_b128 v2, v[16:19]")
    a("ds_write_b128 v2, v[20:23] offset:1024")
    for r in range(8):
        a(f"v_mov_b32 v{16+r}, v{24+r}")
    a("L_g1_khj:")
    a.wait(vm=bias)
    unpack(a, 64, 32)
    a("v_lshlrev_b32 v5, 4, v13")
    a("v_lshrrev_b32 v2, 5, v1")
    a("v_lshl_add_u32 v5, v2, 3, v5")
    a("s_lshl_b32 s25, s30, 16")
    a("s_lshl_b32 s26, s23, 15")
    a("s_add_u32 s25, s25, s26")
    a("s_lshl_b32 s26, s28, 14")
    a("s_add_u32 s25, s25, s26")
    a(f"s_add_u32 s25, s25, {WS_G}")
    a("v_add_u32 v5, s25, v5")
    a("v_add_u32 v4, 8192, v5")
    a("s_mov_b32 s25, 0x3d372713")
    a("s_mov_b32 s26, 0xc0135761")
    a("s_waitcnt lgkmcnt(0)")
    a("s_barrier")
    a("ds_read_b128 v[40:43], v3")
    a("ds_read_b128 v[44:47], v3 offset:1024")
    a("s_waitcnt lgkmcnt(0)")
    for i in range(8):
        a(f"v_add_f32 v{16+i}, v{16+i}, v{40+i}")
    for i in range(0, 8, 2):
        a(f"v_cvt_pk_bf16_f32 v48, v{16+i}, v{17+i}")
        a(f"v_lshlrev_b32 v{16+i}, 16, v48")
        a(f"v_and_b32 v{17+i}, 0xffff0000, v48")
        a(f"v_add_f32 v{16+i}, v{16+i}, v{32+i}")
        a(f"v_add_f32 v{17+i}, v{17+i}, v{33+i}")
        a(f"v_cvt_pk_bf16_f32 v48, v{16+i}, v{17+i}")
        a(f"v_lshlrev_b32 v{16+i}, 16, v48")
        a(f"v_and_b32 v{17+i}, 0xffff0000, v48")
    for i in range(8):
        a(f"v_mul_f32 v{32+i}, v{16+i}, v{16+i}")
        a(f"v_fma_f32 v{32+i}, v{32+i}, s25, 1.0")
        a(f"v_mul_f32 v{32+i}, v{16+i}, v{32+i}")
        a(f"v_mul_f32 v{32+i}, s26, v{32+i}")
    for i in range(8):
        a(f"v_exp_f32 v{32+i}, v{32+i}")
    for i in range(8):
        a(f"v_add_f32 v{32+i}, 1.0, v{32+i}")
    for i in range(8):
        a(f"v_rcp_f32 v{32+i}, v{32+i}")
    for i in range(8):
        a(f"v_mul_f32 v{16+i}, v{16+i}, v{32+i}")
    for i in range(0, 8, 2):
        a(f"v_cvt_pk_bf16_f32 v{48+i//2}, v{16+i}, v{17+i}")
    a("global_store_dwordx2 v5, v[48:49], s[18:19]")
    a("global_store_dwordx2 v4, v[50:51], s[18:19]")
    P.stamp(); P.flush()
    a("s_endpgm")

def gen_k2(S):
    a = Asm()
    P = Prof(a, 1)
    a("s_cmp_ge_u32 s2, 256")
    a("s_cbranch_scc1 L_k2_done")
    P.stamp()
    a("s_load_dwordx4 s[12:15], s[0:1], 80")
    a("s_load_dwordx2 s[18:19], s[0:1], 128")
    a("s_load_dwordx2 s[16:17], s[0:1], 64")
    a("s_load_dwordx2 s[38:39], s[0:1], 96")
    a("v_lshrrev_b32 v2, 6, v0")
    a("v_and_b32 v1, 63, v0")
    a("v_readfirstlane_b32 s22, v2")
    a("s_and_b32 s3, s2, 7")
    a("s_lshr_b32 s25, s2, 3")
    a("s_mul_i32 s26, s25, 37")
    a("s_lshr_b32 s26, s26, 8")
    a("s_mul_i32 s27, s26, 7")
    a("s_sub_u32 s25, s25, s27")
    a("s_lshr_b32 s27, s3, 1")
    a("s_mul_i32 s27, s27, 7")
    a("s_add_u32 s30, s27, s25")
    a("s_and_b32 s27, s3, 1")
    a("s_lshl_b32 s27, s27, 2")
    a("s_add_u32 s31, s27, s26")
    a("s_waitcnt lgkmcnt(0)")
    a("s_cmp_ge_u32 s2, 224")
    a("s_cbranch_scc1 L_convonly")
    a.uniq = "L_cva"
    gemm1_conv(a, S, P)
    a("L_convonly:")
    a.uniq = "L_cvb"
    for y in conv_gen(a, 0):
        if y == "bar": a("s_barrier")
    a("L_k2_done:")
    a("s_endpgm")
    return head("mix1_kernel") + a.text() + kd("mix1_kernel", 256)

def gen_k3(S):
    a = Asm()
    a("s_cmp_ge_u32 s2, 256")
    a("s_cbranch_scc1 L_k3_done")
    a("v_lshrrev_b32 v2, 6, v0")
    a("v_readfirstlane_b32 s22, v2")
    a("s_and_b32 s3, s2, 7")
    a("s_lshr_b32 s25, s2, 3")
    a("s_and_b32 s26, s25, 7")
    a("s_lshr_b32 s27, s3, 1")
    a("s_lshl_b32 s27, s27, 3")
    a("s_add_u32 s30, s27, s26")
    a("s_lshr_b32 s31, s25, 3")
    a("s_and_b32 s27, s3, 1")
    a("s_lshl_b32 s27, s27, 2")
    a("s_add_u32 s31, s31, s27")
    gemm_body(a, 2, S)
    a("L_k3_done:")
    a("s_endpgm")
    return head("mix2_kernel") + a.text() + kd("mix2_kernel", 128)

def main(out):
    hdr = open("cdna_kernels/" + NAME + ".s.ref").read().split("; Override")[0]
    S2, S3 = int(os.environ.get("S2", 7)), int(os.environ.get("S3", 9))
    s = hdr
    s += "; @launch kernel=prep_kernel grid=(512,1,1) block=(512,1,1) lds=49664\n"
    s += f"; @launch kernel=mix1_kernel grid=(256,1,1) block=(512,1,1) lds={S2*16384+49152}\n"
    s += f"; @launch kernel=mix2_kernel grid=(256,1,1) block=(512,1,1) lds={S3*16384}\n"
    s += '.amdgcn_target "amdgcn-amd-amdhsa--gfx950"\n'
    s += gen_prep()
    s += gen_k2(S2)
    s += gen_k3(S3)
    open(out, "w").write(s)

if __name__ == "__main__":
    main(sys.argv[1] if len(sys.argv) > 1 else "k5.s")
```
